```python
import torch

def _softmax(x, axis=-1):
    return torch.softmax(x, dim=axis)
def _gelu(x):
    return torch.nn.functional.gelu(x, approximate="tanh")
def _silu(x):
    return torch.nn.functional.silu(x)
def _sigmoid(x):
    return torch.sigmoid(x)
def _layernorm(x, axis=-1, eps=1e-5):
    m = x.mean(dim=axis, keepdim=True)
    v = x.var(dim=axis, keepdim=True, unbiased=False)
    return (x - m) / torch.sqrt(v + eps)
def _scatter_add(tgt, idx, src, axis=0):
    return tgt.clone().index_add_(axis, idx, src)
def _segment_sum(src, seg, n):
    out = torch.zeros((n,) + src.shape[1:], dtype=src.dtype)
    return out.index_add_(0, seg, src)
def _pad(x, pw):
    flat = tuple(v for pair in reversed(pw) for v in pair)
    return torch.nn.functional.pad(x, flat)

kernel_name = 'gated_mix__mha_block__spectral_fnet__prompt'

def setup_inputs():

    _w = (lambda a: (lambda t: t.to(torch.bfloat16) if t.is_floating_point() else t)(torch.as_tensor(a)))
    def _A_setup():
        B, S, D, H = 1, 2048, 1024, 32
        return {
            "x": _w((lambda *s: torch.randn(*s, dtype=torch.bfloat16) * 0.05)(B, S, D)),
            "wqkv": _w((lambda *s: torch.randn(*s, dtype=torch.bfloat16) * 1.6)(D, 3 * D)),
            "wo": _w((lambda *s: torch.randn(*s, dtype=torch.bfloat16) * 0.2)(D, D)),
        }
    _A_in = _A_setup()

    def _B_setup():
        B, S, D = 1, 2048, 1024
        ns = torch.arange(S)[:, None] * torch.arange(S)[None, :]
        nd = torch.arange(D)[:, None] * torch.arange(D)[None, :]
        Ws_re = torch.cos(-2.0 * torch.pi * ns / S).to(float)
        Ws_im = torch.sin(-2.0 * torch.pi * ns / S).to(float)
        Wd_re = torch.cos(-2.0 * torch.pi * nd / D).to(float)
        Wd_im = torch.sin(-2.0 * torch.pi * nd / D).to(float)
        return {
            "x": _w((lambda *s: torch.randn(*s, dtype=torch.bfloat16) * 0.05)(B, S, D)),
            "dft_seq_re": _w(Ws_re),
            "dft_seq_im": _w(Ws_im),
            "dft_hid_re": _w(Wd_re),
            "dft_hid_im": _w(Wd_im),
        }
    _B_in = _B_setup()

    return {
        "A_x": _A_in["x"],
        "A_wqkv": _A_in["wqkv"],
        "A_wo": _A_in["wo"],
        "B_x": _B_in["x"],
        "B_dft_seq_re": _B_in["dft_seq_re"],
        "B_dft_seq_im": _B_in["dft_seq_im"],
        "B_dft_hid_re": _B_in["dft_hid_re"],
        "B_dft_hid_im": _B_in["dft_hid_im"],
        "gate_w": _w((lambda *s: torch.randn(*s, dtype=torch.bfloat16) * 0.05)(1024) * 16.0),
    }

def reference(A_x, A_wqkv, A_wo, B_x, B_dft_seq_re, B_dft_seq_im, B_dft_hid_re, B_dft_hid_im, gate_w):
    def _A_ref(x, wqkv, wo):
        B, S, D = x.shape
        H = 32
        Dh = D // H
        qkv = (lambda x, *d: x.permute(*d))((x @ wqkv).reshape(B, S, 3, H, Dh), 2, 0, 3, 1, 4)
        q, k, v = qkv[0], qkv[1], qkv[2]
        scores = torch.einsum("bhqd,bhkd->bhqk", q, k) * (Dh ** -0.5)
        p = _softmax(scores, axis=-1)
        o = torch.einsum("bhqk,bhkd->bhqd", p, v)
        return (lambda x, *d: x.permute(*d))(o, 0, 2, 1, 3).reshape(B, S, D) @ wo

    def _B_ref(x, dft_seq_re, dft_seq_im, dft_hid_re, dft_hid_im):
        a = torch.einsum("bsd,ed->bse", x, dft_hid_re)
        b = torch.einsum("bsd,ed->bse", x, dft_hid_im)
        y = torch.einsum("ts,bse->bte", dft_seq_re, a) - torch.einsum("ts,bse->bte", dft_seq_im, b)
        return y

    x = A_x
    g = _sigmoid((x * gate_w).sum(-1, keepdims=True))
    a = _A_ref(x, A_wqkv, A_wo)
    b = _B_ref(x, B_dft_seq_re, B_dft_seq_im, B_dft_hid_re, B_dft_hid_im)
    return g * a + (1 - g) * b
```

```python
class Asm:
    def __init__(self):
        self.lines = []
        self._lab = 0
    def __call__(self, s=""):
        for l in s.strip("\n").split("\n"):
            l = l.strip()
            if not l: continue
            self.lines.append(l if l.endswith(":") or l.startswith(".") or l.startswith(";") else "    " + l)
    def ext(self, seq):
        for s in seq: self(s)
    def label(self, base):
        self._lab += 1
        return f"L_{base}_{self._lab}"
    def text(self):
        return "\n".join(self.lines) + "\n"

def vr(b, n=1, k="v"):
    return f"{k}{b}" if n == 1 else f"{k}[{b}:{b+n-1}]"
def ar(b, n=1): return vr(b, n, "a")
def sr(b, n=1): return vr(b, n, "s")

def srd(a, d, base, nbytes):
    a(f"s_mov_b32 s{d}, s{base}")
    a(f"s_mov_b32 s{d+1}, s{base+1}")
    a(f"s_mov_b32 s{d+2}, {nbytes}")
    a(f"s_mov_b32 s{d+3}, 0x00020000")

def interleave(main, fill):
    out = []
    for i, m in enumerate(main):
        out.append(m)
        out += fill.get(i, [])
    return out

def kernel_head(a, name):
    a(f".globl {name}")
    a(".p2align 8")
    a(f".type {name},@function")
    a(f"{name}:")

def kernel_desc(name, vgpr, accum, sgpr=102):
    return f""".p2align 6
.amdhsa_kernel {name}
  .amdhsa_next_free_vgpr {vgpr}
  .amdhsa_next_free_sgpr {sgpr}
  .amdhsa_accum_offset {accum}
  .amdhsa_group_segment_fixed_size 0
  .amdhsa_kernarg_size 96
  .amdhsa_user_sgpr_count 2
  .amdhsa_user_sgpr_kernarg_segment_ptr 1
  .amdhsa_system_sgpr_workgroup_id_x 1
  .amdhsa_float_denorm_mode_32 3
.end_amdhsa_kernel
"""

import re
def regs_of(tok):
    m = re.fullmatch(r"([va])\[(\d+):(\d+)\]", tok)
    if m: return {(m.group(1), i) for i in range(int(m.group(2)), int(m.group(3))+1)}
    m = re.fullmatch(r"([va])(\d+)", tok)
    if m: return {(m.group(1), int(m.group(2)))}
    return set()
def operands(ins):
    p = ins.split(None, 1)
    if len(p) < 2: return []
    return [t.strip().split()[0] for t in p[1].split(",") if t.strip()]
class LgkmTracker:
    def __init__(self, age=0): self.pend = []; self.age = age; self.clock = 0
    def feed(self, seq):
        out = []
        for ins in seq:
            self.clock += 1
            op = ins.split()[0]
            m = re.search(r"lgkmcnt\((\d+)\)", ins) if op in ("s_waitcnt", "@vm") else None
            if m:
                n = int(m.group(1)); self.pend = self.pend[len(self.pend)-n:] if n else []
                out.append(ins); continue
            touched = set()
            for t in operands(ins.split(";")[0]): touched |= regs_of(t)
            last = -1
            for i, (d, _) in enumerate(self.pend):
                if d & touched: last = i
            if last >= 0:
                if self.age:
                    for i, (_, c) in enumerate(self.pend):
                        if self.clock - c >= self.age: last = max(last, i)
                n = min(len(self.pend) - 1 - last, 15)
                out.append(f"s_waitcnt lgkmcnt({n})")
                self.pend = self.pend[len(self.pend)-n:] if n else []
            out.append(ins)
            if op.startswith("ds_read"): self.pend.append((regs_of(operands(ins)[0]), self.clock))
            elif op.startswith("ds_"): self.pend.append((set(), self.clock))
        return out

def resolve_waits(lines):
    out = []; q = []
    for l in lines:
        s = l.strip()
        if s.startswith("@vmset"):
            q = []
            for t in s.split()[1:]:
                n, _, k = t.partition("*"); q += [n] * int(k or 1)
            continue
        if s.startswith("@vmq"):
            out.append("    ; vm queue: " + " ".join(q)); continue
        if s.startswith("@vm"):
            body, _, extra = s[3:].partition("|")
            tags = set(body.split())
            last = max([i for i, t in enumerate(q) if t in tags], default=-1)
            n = len(q) - 1 - last
            if last >= 0:
                assert n <= 63
                q = q[last+1:]
                out.append(f"    s_waitcnt vmcnt({n}) {extra.strip()}".rstrip())
            elif extra.strip(): out.append(f"    s_waitcnt {extra.strip()}")
            continue
        op = s.split()[0] if s else ""
        if op.startswith(("buffer_", "global_")):
            m = re.search(r";T=(\S+)", s)
            if not (m and m.group(1) == "NOCOUNT"): q.append(m.group(1) if m else "_")
            l = l.split(";T=")[0].rstrip()
        elif op == "s_waitcnt":
            m = re.search(r"vmcnt\((\d+)\)", s)
            if m:
                n = int(m.group(1)); q = q[len(q)-n:] if n else []
        out.append(l)
    return out
```

```python
import re
TRANS = ("v_exp_f32","v_log_f32","v_rcp_f32","v_rsq_f32","v_sqrt_f32","v_sin_f32","v_cos_f32")
def regset(tok):
    tok = tok.strip().lstrip("-")
    m = re.fullmatch(r"abs\((.*)\)", tok) or re.fullmatch(r"\|(.*)\|", tok)
    if m: tok = m.group(1)
    m = re.fullmatch(r"([vas])\[(\d+):(\d+)\]", tok)
    if m: return {(m.group(1), i) for i in range(int(m.group(2)), int(m.group(3))+1)}
    m = re.fullmatch(r"([vas])(\d+)", tok)
    if m: return {(m.group(1), int(m.group(2)))}
    if tok == "vcc": return {("s","vcc")}
    if tok == "exec": return {("s","exec")}
    if tok == "m0": return {("s","m0")}
    return set()
def parse(line):
    s = line.split(";")[0].strip()
    if not s or s.endswith(":") or s.startswith("."): return None
    p = s.split(None, 1); op = p[0]
    ops = [t.strip().split()[0] for t in p[1].split(",") if t.strip()] if len(p) > 1 else []
    R = [regset(t) for t in ops]
    d = dict(op=op, text=s, defs=set(), uses=set(), srcC=set(), ab=set(), kind="other", passes=0)
    U = lambda xs: set().union(*xs) if xs else set()
    if op.startswith("v_mfma") or op.startswith("v_smfmac"):
        d["kind"] = "mfma"; d["defs"] = R[0]
        d["passes"] = 8 if "32x32" in op else 4
        if op.startswith("v_smfmac"): d["srcC"] = R[0]; d["ab"] = U(R[1:4])
        else: d["srcC"] = R[3]; d["ab"] = U(R[1:3])
        d["uses"] = d["srcC"] | d["ab"]
    elif op.startswith("v_"):
        d["kind"] = "valu"
        if op.startswith("v_permlane") and "swap" in op: d["defs"] = R[0] | R[1]; d["uses"] = R[0] | R[1]
        elif op.startswith("v_cmp"): d["defs"] = R[0]; d["uses"] = U(R[1:])
        else:
            d["defs"] = R[0]; d["uses"] = U(R[1:])
            if op.startswith(("v_fmac","v_dot2c","v_writelane")) or "dpp" in s or "row_" in s or "quad_perm" in s: d["uses"] |= R[0]
            if op.startswith(("v_add_co","v_addc_co","v_sub_co")): d["defs"] |= R[1]
        d["dpp"] = ("row_" in s or "quad_perm" in s or "wave_" in s)
    elif op.startswith("ds_"):
        d["kind"] = "ds"
        if op.startswith(("ds_read","ds_bpermute","ds_swizzle")): d["defs"] = R[0]; d["uses"] = U(R[1:])
        else: d["uses"] = U(R)
    elif op.startswith(("buffer_","global_")):
        d["kind"] = "vmem"; d["lds"] = bool(re.search(r"\blds\b", s))
        if "load" in op and not d["lds"]: d["defs"] = R[0]; d["uses"] = U(R[1:])
        else: d["uses"] = U(R)
        if "store" in op and ("x4" in op or "x3" in op): d["wide"] = R[0] if op.startswith("buffer") else R[1]
    elif op.startswith("s_"):
        d["kind"] = "salu"
        if op.startswith(("s_cmp","s_waitcnt","s_barrier","s_nop","s_branch","s_cbranch","s_endpgm","s_sleep","s_setprio","s_bitcmp")): d["uses"] = U(R)
        else: d["defs"] = R[0] if R else set(); d["uses"] = U(R[1:])
        if "saveexec" in op: d["defs"] |= {("s","exec")}
    return d
def states(d):
    if d["op"] == "s_nop": return int(d["text"].split()[1], 0) + 1
    return 1
def need(p, c):
    n = 0
    vec = lambda s: {r for r in s if r[0] in "va"}
    sc = lambda s: {r for r in s if r[0] == "s"}
    if p["kind"] == "valu":
        pv, ps = vec(p["defs"]), sc(p["defs"])
        if c["kind"] == "mfma" and pv & c["uses"]: n = max(n, 2)
        if c["kind"] == "valu":
            if p["op"] in TRANS and pv & c["uses"]: n = max(n, 1)
            if c["op"].startswith("v_permlane") and pv & c["uses"]: n = max(n, 2)
            if c.get("dpp") and pv & c["uses"]: n = max(n, 2)
            if c["op"].startswith(("v_readlane","v_readfirstlane")) and pv & c["uses"]: n = max(n, 1)
            if ps & c["uses"]: n = max(n, 4 if c["op"].startswith(("v_readlane","v_writelane")) else 2)
            if p["op"].startswith("v_dot") and pv & (c["uses"] | c["defs"]) and p["op"] != c["op"]: n = max(n, 3)
            if "sdwa" in p["op"] and pv & c["uses"]: n = max(n, 1)
        if p["op"] in TRANS and c["kind"] in ("vmem","ds") and pv & c["uses"]: n = max(n, 1)
        if p["op"].startswith("v_dot") and c["kind"] in ("vmem","ds","mfma") and pv & c["uses"]: n = max(n, 3)
        if c["kind"] == "vmem" and ps & c["uses"]: n = max(n, 5)
        if c["kind"] == "salu" and ps & c["uses"]: n = max(n, 1)
    if p["kind"] == "mfma":
        P = p["passes"]; D = p["defs"]
        if c["kind"] == "mfma":
            if D & c["ab"]: n = max(n, {4: 8, 8: 12}[P])
            if D & c["srcC"] and not (D == c["srcC"] and c["passes"] == P): n = max(n, {4: 6, 8: 10}[P])
            if D & c["defs"] and not (D & c["srcC"]) and not (D == c["defs"] and c["passes"] == P): n = max(n, {4: 6, 8: 10}[P])
        elif c["kind"] in ("valu","vmem","ds"):
            if D & (c["uses"] | c["defs"]): n = max(n, {4: 8, 8: 12}[P])
            if c["kind"] == "valu" and p["srcC"] & c["defs"]: n = max(n, {4: 3, 8: 7}[P])
    if p["kind"] == "vmem" and p.get("wide") and p["wide"] & c["defs"]: n = max(n, 2)
    if p["kind"] == "salu" and ("s","m0") in p["defs"] and c["kind"] == "vmem" and c.get("lds"): n = max(n, 1)
    return n
def fix(lines, report=None):
    out = []; hist = []
    def gap_needed(hist, c):
        dist = 0; worst = 0
        for p in reversed(hist):
            worst = max(worst, need(p, c) - dist)
            dist += states(p)
            if dist >= 20: break
        return worst
    for l in lines:
        c = parse(l)
        if c is None: out.append(l); continue
        w = gap_needed(hist, c)
        if w > 0:
            nop = f"    s_nop {w-1}"
            if report is not None: report.append((w, c["text"]))
            out.append(nop); hist.append(parse(nop))
        out.append(l); hist.append(c)
    labels = {l.strip()[:-1]: i for i, l in enumerate(out) if l.strip().endswith(":") and not l.strip().startswith(";")}
    for i, l in enumerate(out):
        c = parse(l)
        if c and c["op"].startswith(("s_branch","s_cbranch")):
            tgt = c["text"].split()[1]
            h = [x for x in (parse(y) for y in out[max(0, i-40):i+1]) if x]
            base = len(h); k = labels[tgt]; cnt = 0
            while cnt < 20 and k < len(out):
                x = parse(out[k]); k += 1
                if x is None: continue
                w = gap_needed(h, x)
                assert w <= 0, f"hazard across branch to {tgt}: {x['text']} needs {w} more"
                h.append(x); cnt += 1
                if x["op"] in ("s_branch","s_endpgm"): break
    return out
```

```python
import sys, math, struct
from asmlib import *
import hazard
NAME = "gated_mix__mha_block__spectral_fnet__prompt_kernel"
OPT = {}
WS_KV = 0
WS_O  = 8 << 20
WS_Z  = 12 << 20
WS_Y  = 16 << 20
WS_G  = 20 << 20
WS_FB = (20 << 20) + 0x10000
WS_FC = (20 << 20) + 0x20000
WS_FD = (20 << 20) + 0x30000
WS_ST = 22 << 20
WS_USED = 24 << 20
sX, sW, sWS, sWO, sOUT, sGW, sDBG = 8, 12, 16, 20, 24, 28, 32
sWAVE, sA, sB, sWR, sWH = 36, 37, 38, 39, 40
sKX, sKW, sKW2, sMD, sRD, sCNT, sT, sT2 = 41, 42, 43, 44, 45, 46, 47, 48
sMX, sMW, sKC, sBX, sBW = 49, 50, 51, 52, 53
sHEAD, sCOL, sKVB, sKVO, sKVN, sWOO, sWOM, sPASS, sSPIN, sT3, sT4, sONE = 64, 65, 66, 67, 68, 69, 70, 71, 72, 73, 74, 75
sTM = 76
sOO, sMIR, sYC = 80, 81, 82
vLANE, vFLG, vL16 = 1, 2, 3
vGX, vGW, vXB, vWB, vXA, vWA = 4, 8, 11, 12, 13, 15
vT = 248
vU = 17
vFR, vACC = 20, 100
vSTC, vSTS, vF32C, vF32S = 200, 216, 232, 240
vSTAMP = 255
aS1C, aS1S, aQ, aKV, aY, aW31 = 0, 16, 32, 64, 128, 144
NS, SLOT, WOFF = 4, 40960, 16384
LDS_BYTES = NS*SLOT
LDS_HST, LDS_HTR = 3*SLOT, 3*SLOT + 24576
LDS_Z, LDS_QX, LDS_KVX, LDS_W31 = 0, 16384, 32768, 65536
LDS_LX, LDS_OX = 124*1024, 128*1024
QSCALE = math.log2(math.e) / math.sqrt(32.0)
SPIN_MAX = 1 << 20
def f32hex(x): return "0x%08x" % struct.unpack("<I", struct.pack("<f", x))[0]
def acc(u, p, th): return vACC + (u*6 + p*2 + th)*4
def WS(): return f"s[{sWS}:{sWS+3}]"
M32 = "v_mfma_f32_32x32x16_bf16"
M16 = "v_mfma_f32_16x16x32_bf16"
def cv(d, s0, s1=None): return f"v_cvt_pk_bf16_f32 v{d}, v{s0}, v{s0+1 if s1 is None else s1}"

_st = [0]
def stamp(a):
    if not OPT.get("stamps"): return
    i = _st[0]; _st[0] += 1
    a(f"s_memrealtime s[{sTM}:{sTM+1}]"); a(f"s_memtime s[{sTM+2}:{sTM+3}]"); a("s_waitcnt lgkmcnt(0)")
    a(f"v_writelane_b32 v{vSTAMP}, s{sTM}, {2*i}"); a(f"v_writelane_b32 v{vSTAMP}, s{sTM+2}, {2*i+1}")
def stamp_out(a):
    if not OPT.get("stamps"): return
    a(f"s_lshl_b32 s{sT}, s2, 10"); a(f"s_add_u32 s{sT}, s{sT}, {WS_ST}")
    a(f"v_lshlrev_b32 v{vT}, 2, v0")
    a(f"buffer_store_dword v{vSTAMP}, v{vT}, {WS()}, s{sT} offen")

def poll(a, load, check):
    L = a.label("poll"); D = a.label("pollok")
    a(f"s_mov_b32 s{sSPIN}, {SPIN_MAX}")
    a(f"{L}:")
    a.ext(load); a("s_waitcnt vmcnt(0)"); a.ext(check)
    a(f"s_cbranch_scc1 {D}")
    a("s_sleep 1")
    a(f"s_sub_u32 s{sSPIN}, s{sSPIN}, 1"); a(f"s_cmp_lg_u32 s{sSPIN}, 0"); a(f"s_cbranch_scc1 {L}")
    a(f"{D}:")
def set_flag(a, mask):
    a(f"s_mov_b64 exec, {mask}")
    a(f"v_mov_b32 v{vT}, 1")
    a(f"buffer_store_dword v{vT}, v{vFLG}, {WS()}, 0 offen sc1")
    a("s_mov_b64 exec, -1")

def entry(a):
    t = vT; l = vLANE
    a(f"""
    s_cmp_ge_u32 s2, 256
    s_cbranch_scc1 L_end
    s_load_dwordx4 s[4:7], s[0:1], 0
    s_load_dwordx2 s[54:55], s[0:1], 16
    s_load_dwordx8 s[56:63], s[0:1], 64
    """)
    if OPT.get("stamps"): a(f"v_mov_b32 v{vSTAMP}, 0")
    stamp(a)
    a(f"""
    v_and_b32 v{l}, 63, v0
    v_lshrrev_b32 v{t}, 6, v0
    s_and_b32 s{sA}, s2, 7
    v_readfirstlane_b32 s{sWAVE}, v{t}
    s_lshl_b32 s{sA}, s{sA}, 1
    s_bfe_u32 s{sT}, s2, 0x10003
    s_add_u32 s{sA}, s{sA}, s{sT}
    s_lshr_b32 s{sB}, s2, 4
    s_lshr_b32 s{sWR}, s{sWAVE}, 1
    s_and_b32 s{sWH}, s{sWAVE}, 1
    v_lshlrev_b32 v{vL16}, 4, v{l}
    s_lshl_b32 s{sHEAD}, s{sA}, 1
    s_add_u32 s{sHEAD}, s{sHEAD}, s{sWH}
    """)
    a(f"""
    s_lshr_b32 s{sT}, s2, 5
    s_lshl_b32 s{sT}, s{sT}, 3
    s_lshl_b32 s{sT2}, s{sWAVE}, 1
    s_add_u32 s{sT}, s{sT}, s{sT2}
    s_lshl_b32 s{sT}, s{sT}, 5
    s_and_b32 s{sT2}, s2, 31
    s_add_u32 s{sT3}, s{sT}, s{sT2}
    s_lshl_b32 s{sT}, s{sT3}, 11
    s_add_u32 s{sT2}, s{sT}, {32*2048 - 2048}
    s_mul_i32 s{sT4}, s{sWAVE}, 6144
    s_add_u32 s{sT4}, s{sT4}, {LDS_HST}
    s_mov_b32 m0, s{sT4}
    s_waitcnt lgkmcnt(0)
    """)
    srd(a, sX, 4, 2048*1024*2); srd(a, sGW, 56, 2048)
    X = f"s[{sX}:{sX+3}]"
    a(f"buffer_load_dwordx4 v{vL16}, {X}, s{sT} offen lds ;T=H")
    a(f"buffer_load_dwordx4 v{vL16}, {X}, s{sT} offen offset:1024 lds ;T=H")
    a(f"buffer_load_dwordx4 v{vL16}, {X}, s{sT2} offen offset:2048 lds ;T=H")
    a(f"buffer_load_dwordx4 v{vL16}, {X}, s{sT2} offen offset:3072 lds ;T=H")
    a("s_add_u32 m0, m0, 4096")
    srd(a, sW, 6, 1024*3072*2)
    a(f"buffer_load_dwordx4 v{vL16}, s[{sGW}:{sGW+3}], 0 offen lds ;T=H")
    a(f"buffer_load_dwordx4 v{vL16}, s[{sGW}:{sGW+3}], 0 offen offset:1024 lds ;T=H")
    srd(a, sWS, 62, WS_USED); srd(a, sWO, 54, 1024*1024*2); srd(a, sOUT, 58, 2048*1024*2); srd(a, sDBG, 60, 256)

def flags_setup(a):
    a(f"""
    s_and_b32 s{sCOL}, s2, 31
    s_lshr_b32 s{sT}, s2, 5
    s_lshl_b32 s{sT}, s{sT}, 6
    s_add_u32 s{sCOL}, s{sCOL}, s{sT}
    s_lshl_b32 s{sT}, s{sWR}, 5
    s_add_u32 s{sCOL}, s{sCOL}, s{sT}
    s_lshl_b32 s{sT}, s{sHEAD}, 1
    s_add_u32 s{sT}, s{sT}, s{sWR}
    s_lshl_b32 s{sT}, s{sT}, 5
    s_add_u32 s{sT}, s{sT}, s{sB}
    s_lshl_b32 s{sT}, s{sT}, 2
    s_add_u32 s{sT}, s{sT}, {WS_FB}
    v_mov_b32 v{vFLG}, s{sT}
    s_lshl_b32 s{sT}, s{sCOL}, 1
    s_add_u32 s{sT}, s{sT}, s{sWH}
    s_lshl_b32 s{sT}, s{sT}, 2
    s_add_u32 s{sT}, s{sT}, {WS_FC}
    v_writelane_b32 v{vFLG}, s{sT}, 1
    s_add_u32 s{sT2}, s{sT}, 4096
    s_cmp_eq_u32 s{sCOL}, 0
    s_cselect_b32 s{sT}, s{sT2}, s{sT}
    v_writelane_b32 v{vFLG}, s{sT}, 3
    s_lshl_b32 s{sT}, s{sB}, 1
    s_add_u32 s{sT}, s{sT}, s{sWR}
    s_lshl_b32 s{sT}, s{sT}, 5
    s_add_u32 s{sT}, s{sT}, s{sHEAD}
    s_lshl_b32 s{sT}, s{sT}, 2
    s_add_u32 s{sT}, s{sT}, {WS_FD}
    v_writelane_b32 v{vFLG}, s{sT}, 2
    v_mov_b32 v{vT}, 0
    s_mov_b64 exec, 15
    buffer_store_dword v{vT}, v{vFLG}, {WS()}, 0 offen sc1 ;T=F
    s_mov_b64 exec, -1
    """)

def kaddr():
    return [f"s_lshl_b32 s{sKX}, s{sKC}, 7", f"s_add_u32 s{sKX}, s{sKX}, s{sBX}",
            f"s_mul_i32 s{sKW}, s{sKC}, {64*6144}", f"s_add_u32 s{sKW}, s{sKW}, s{sBW}", f"s_add_u32 s{sKW2}, s{sKW}, {32*6144}"]
def p1_setup(a):
    l = vLANE; t = vT
    a(f"""
    v_lshrrev_b32 v{t}, 3, v{l}
    v_lshrrev_b32 v{t+1}, 4, v{l}
    v_and_b32 v{t+2}, 7, v{l}
    v_xor_b32 v{t+3}, v{t+1}, v{t+2}
    v_lshlrev_b32 v{t+3}, 4, v{t+3}
    v_lshl_add_u32 v{vGX}, v{t}, 11, v{t+3}
    v_xor_b32 v{vGX+1}, 64, v{vGX}
    v_add_u32 v{vGX+1}, {8*2048-1024}, v{vGX+1}
    v_add_u32 v{vGX+2}, {16*2048-2048}, v{vGX}
    v_add_u32 v{vGX+3}, {16*2048-2048}, v{vGX+1}
    v_mul_u32_u24 v{t}, 6144, v{t}
    v_and_b32 v{t+1}, 1, v{t+1}
    s_lshl_b32 s{sT}, s{sWH}, 1
    v_or_b32 v{t+1}, s{sT}, v{t+1}
    v_lshlrev_b32 v{t+1}, 1, v{t+1}
    v_xor_b32 v{t+1}, v{t+1}, v{t+2}
    v_lshl_add_u32 v{vGW}, v{t+1}, 4, v{t}
    v_add_u32 v{vGW+1}, 1024, v{vGW}
    v_add_u32 v{vGW+2}, 2048, v{vGW}
    s_lshl_b32 s{sBX}, s{sB}, 18
    s_lshl_b32 s{sT}, s{sWAVE}, 16
    s_add_u32 s{sBX}, s{sBX}, s{sT}
    s_mul_i32 s{sBW}, s{sWAVE}, {8*6144}
    s_lshl_b32 s{sT}, s{sA}, 7
    s_add_u32 s{sBW}, s{sBW}, s{sT}
    s_lshl_b32 s{sMX}, s{sWAVE}, 12
    s_mul_i32 s{sMW}, s{sWAVE}, 3072
    s_add_u32 s{sMW}, s{sMW}, {WOFF}
    s_mov_b32 s{sMD}, 0
    s_mov_b32 s{sRD}, 0
    """)
    rot = OPT.get("rot", 4)
    if rot == 0: a(f"s_mov_b32 s{sKC}, 0")
    else:
        a(f"s_and_b32 s{sT}, s2, 7")
        if rot == 16: a(f"s_lshl_b32 s{sT}, s{sT}, 1")
        a(f"s_add_u32 s{sKC}, s{sB}, s{sT}")
        a(f"s_and_b32 s{sKC}, s{sKC}, {rot-1}")
        a(f"s_mul_i32 s{sKC}, s{sKC}, {16//rot}")
    a.ext(kaddr())
def raddr():
    return [f"v_add_u32 v{vXA}, s{sRD}, v{vXB}", f"v_add_u32 v{vWA}, s{sRD}, v{vWB}",
            f"v_xor_b32 v{vWA+1}, 32, v{vWA}", f"v_xor_b32 v{vXA+1}, 64, v{vXA}"]
def p1_setup2():
    l = vLANE; t = vT
    s = f"""
    v_and_b32 v{t}, 15, v{l}
    v_lshrrev_b32 v{t+1}, 1, v{t}
    v_lshrrev_b32 v{t+2}, 4, v{l}
    v_xor_b32 v{t+1}, v{t+1}, v{t+2}
    v_lshlrev_b32 v{t+1}, 4, v{t+1}
    v_lshl_add_u32 v{vXB}, v{t}, 7, v{t+1}
    s_lshl_b32 s{sT}, s{sWR}, 13
    v_add_u32 v{vXB}, s{sT}, v{vXB}
    v_mul_u32_u24 v{t}, 3072, v{t+2}
    v_bfe_u32 v{t+1}, v{l}, 2, 2
    v_lshl_add_u32 v{t}, v{t+1}, 7, v{t}
    v_bfe_u32 v{t+1}, v{l}, 3, 2
    s_lshl_b32 s{sT}, s{sWH}, 1
    v_xor_b32 v{t+1}, s{sT}, v{t+1}
    v_lshl_add_u32 v{t}, v{t+1}, 5, v{t}
    v_and_b32 v{t+1}, 3, v{l}
    v_lshl_add_u32 v{t}, v{t+1}, 3, v{t}
    v_add_u32 v{vWB}, {WOFF}, v{t}
    """
    return [x.strip() for x in s.strip().split("\n")] + raddr()
def wrap(reg): return [f"s_add_u32 s{reg}, s{reg}, {SLOT}", f"s_cmp_eq_u32 s{reg}, {NS*SLOT}", f"s_cselect_b32 s{reg}, 0, s{reg}"]
def dma(c):
    L = []
    for hf in range(2):
        for p in range(3):
            pre = [] if p else ([f"s_add_u32 m0, s{sMW}, s{sMD}"] if hf == 0 else ["s_add_u32 m0, m0, 12288"])
            L.append((pre, f"buffer_load_dwordx4 v{vGW+p}, s[{sW}:{sW+3}], s{sKW2 if hf else sKW} offen offset:{p*1024} lds ;T=C{c}"))
    for i in range(4):
        pre = [] if i else [f"s_add_u32 m0, s{sMX}, s{sMD}"]
        L.append((pre, f"buffer_load_dwordx4 v{vGX+i}, s[{sX}:{sX+3}], s{sKX} offen offset:{i*1024} lds ;T=C{c}"))
    k = kaddr()
    post = [wrap(sMD), [f"s_add_u32 s{sKC}, s{sKC}, 1", f"s_and_b32 s{sKC}, s{sKC}, 15"], k[0:2], k[2:5]]
    return L, post
def dma_groups(c):
    L, post = dma(c)
    g = [pre + [l] for pre, l in L]
    g[-1] = g[-1] + [x for p in post for x in p]
    return g
def xreads(j, buf):
    f = vFR + 40*buf
    return [f"ds_read_b128 v[{f+4*u}:{f+4*u+3}], v{vXA+j} offset:{u*2048}" for u in range(4)]
def wreads(j, buf):
    f = vFR + 40*buf; ws = []
    for p in range(3):
        for th in range(2):
            for h in range(2):
                d = f + 16 + (p*2+th)*4 + 2*h
                ws.append(f"ds_read_b64_tr_b16 v[{d}:{d+1}], v{vWA+th} offset:{j*12288 + p*1024 + h*512}")
    return ws
def rseq(j, buf):
    x = xreads(j, buf); w = wreads(j, buf)
    return [x[0]] + w[0:2] + x[1:] + w[2:]
def mfmas(buf, first=False):
    f = vFR + 40*buf; m = []
    for p in range(3):
        for th in range(2):
            for u in (range(4) if th == 0 else range(3, -1, -1)):
                c = acc(u, p, th); x = vr(f+4*u, 4); w = vr(f+16+(p*2+th)*4, 4)
                A, B = (w, x) if p < 2 else (x, w)
                m.append(f"{M16} {vr(c,4)}, {A}, {B}, {'0' if first else vr(c,4)}")
    return m
def chunk(c, D, extra):
    dma_b = c + D < 16; dma_a = c >= 1 and c - 1 + D < 16; last = c == 15
    m = mfmas(0, c == 0) + mfmas(1)
    fill = {}
    def put(g, ins): fill.setdefault(g, []).extend(ins)
    ga = [1, 6, 11, 16, 21]; BG = 25; gb = [BG+2, BG+6, BG+11, BG+16, BG+21]
    if dma_a:
        L, post = dma(c - 1 + D)
        for g, (pre, l) in zip(ga, L[5:]): put(g-1, pre); put(g, [l])
    free = [g for g in range(0, 21) if not (dma_a and g in ga)]
    for g, r in zip(free, rseq(1, 1)): put(g, [r])
    if dma_a:
        for g, p in zip([22, 23, 24, 24], post): put(g, p)
    if not last:
        put(20, wrap(sRD)); ra = raddr()
        put(BG, [f"@vm C{c+1} | lgkmcnt(0)", "s_barrier"])
        put(21, ra[0:1]); put(22, ra[1:3]); put(23, ra[3:4])
        if dma_b:
            L, post = dma(c + D)
            for g, (pre, l) in zip(gb, L[:5]): put(g-1, pre); put(g, [l])
        free = [g for g in range(BG, 48) if not (dma_b and g in gb)]
        for g, r in zip(free, rseq(0, 0)): put(g, [r])
    for g, ins in extra.items(): put(g, ins)
    return interleave(m, fill)
def p1_main(a):
    a("@vm C0"); a("s_barrier")
    lk = LgkmTracker(age=OPT.get("age", 10))
    a.ext(lk.feed(rseq(0, 0)))
    for c in range(16):
        extra = {}
        if c == 3:
            Ls = a.label("arr")
            extra[47] = [f"s_cmp_lg_u32 s{sWAVE}, 0", f"s_cbranch_scc1 {Ls}", "s_mov_b64 exec, 1",
                         f"buffer_atomic_add v{vU}, v{vU+1}, s[{sDBG}:{sDBG+3}], 0 offen ;T=NOCOUNT", "s_mov_b64 exec, -1", f"{Ls}:"]
        a.ext(lk.feed(chunk(c, 4, extra)))

vH2C, vH2S, vHTC, vHTS, vHX, vHG, vHTMP, vHT, vHZ = 20, 28, 36, 52, 68, 84, 92, 100, 164
def dorder(j8): return 8*(j8 >> 2) + (j8 & 3)
def consts():
    o = []; l = vLANE; t = vT
    b0, b1, sg, tmp = 100, 101, 102, 104
    def pair_table(dc, ds, n, mult, dk="v", half=None):
        for i in range(n):
            q = tmp + 8*(i % 4)
            for e in range(2):
                o.append(f"v_fmamk_f32 v{q+e}, v{b1}, {f32hex(float(mult(2*i+e)))}, v{b0}")
            for e in range(2):
                o.append(f"v_cos_f32 v{q+2+e}, v{q+e}"); o.append(f"v_sin_f32 v{q+4+e}, v{q+e}")
            if dk == "v":
                o.append(cv(dc+i, q+2)); o.append(cv(ds+i, q+4))
                o.append(f"v_xor_b32 v{dc+n+i}, v{sg}, v{dc+i}"); o.append(f"v_xor_b32 v{ds+n+i}, v{sg}, v{ds+i}")
            else:
                o.append(cv(q, q+2)); o.append(cv(q+1, q+4))
                o.append(f"v_xor_b32 v{q+2}, v{sg}, v{q}"); o.append(f"v_xor_b32 v{q+3}, v{sg}, v{q+1}")
                o.append(f"v_accvgpr_write_b32 a{dc+i}, v{q}"); o.append(f"v_accvgpr_write_b32 a{ds+i}, v{q+1}")
                o.append(f"v_accvgpr_write_b32 a{dc+n+i}, v{q+2}"); o.append(f"v_accvgpr_write_b32 a{ds+n+i}, v{q+3}")
    def f32_table(dc, ds):
        for r in range(16):
            o.append(f"v_fmamk_f32 v{ds+r}, v{b1}, {f32hex(float(8*(r>>2) + (r&3)))}, v{b0}")
            o.append(f"v_cos_f32 v{dc+r}, v{ds+r}"); o.append(f"v_sin_f32 v{ds+r}, v{ds+r}")
    def sign(src): return [f"v_and_b32 v{sg}, 1, v{src}", f"v_mul_lo_u32 v{sg}, v{sg}, s{sONE}"]
    o += [f"s_mov_b32 s{sONE}, 0x80008000", f"v_and_b32 v{t}, 31, v{l}", f"v_cvt_f32_u32 v{t+1}, v{t}",
          f"v_lshrrev_b32 v{t+2}, 5, v{l}", f"v_cvt_f32_u32 v{t+2}, v{t+2}"]
    o += [f"v_mul_f32 v{b1}, {f32hex(1/32)}, v{t+1}", f"v_mul_f32 v{b0}, 4.0, v{t+2}", f"v_mul_f32 v{b0}, v{b0}, v{b1}"] + sign(t)
    pair_table(vF32C, vF32S, 4, dorder)
    o += [f"v_mul_f32 v{b1}, {f32hex(1/32)}, v{b1}", f"v_mul_f32 v{b0}, {f32hex(1/32)}, v{b0}"]
    f32_table(vHTC, vHTS)
    o += [f"v_lshrrev_b32 v{t+3}, 1, v{t}", f"v_cvt_f32_u32 v{b1}, v{t+3}", f"v_mul_f32 v{b1}, {f32hex(1/32)}, v{b1}",
          f"v_mul_f32 v{b0}, 4.0, v{t+2}", f"v_mul_f32 v{b0}, v{b0}, v{b1}",
          f"v_and_b32 v{t+4}, 1, v{t}", f"v_cvt_f32_u32 v{t+4}, v{t+4}", f"v_fmamk_f32 v{b0}, v{t+4}, {f32hex(0.25)}, v{b0}"] + sign(t+3)
    pair_table(vH2C, vH2S, 4, dorder)
    nH = len(o)
    o += [f"s_lshl_b32 s{sT}, s{sWH}, 5", f"v_add_u32 v{t+3}, s{sT}, v{t}", f"v_cvt_f32_u32 v{t+3}, v{t+3}",
          f"v_mul_f32 v{b1}, {f32hex(1/2048)}, v{t+3}", f"v_mul_f32 v{b0}, 4.0, v{t+2}", f"v_mul_f32 v{b0}, v{b0}, v{b1}"]
    f32_table(vSTC, vSTS)
    o += [f"v_mul_f32 v{b1}, {f32hex(1/64)}, v{t+3}", f"v_mul_f32 v{b0}, {f32hex(8.0)}, v{t+2}", f"v_mul_f32 v{b0}, v{b0}, v{b1}"] + sign(t)
    pair_table(aS1C, aS1S, 8, lambda i: 16*(i >> 3) + (i & 7), dk="a")
    return o

def twiddle(R, I, C, S, dr, di, tmp, negI):
    o = []
    for k in range(8):
        r, i, c, s = (vr(x+2*k, 2) for x in (R, I, C, S))
        q = tmp + 4*(k % 2); t1, t2 = vr(q, 2), vr(q+2, 2)
        o.append(f"v_pk_mul_f32 {t1}, {i}, {s}")
        o.append(f"v_pk_mul_f32 {t2}, {r}, {s}")
        if negI:
            o.append(f"v_pk_fma_f32 {t1}, {r}, {c}, {t1} neg_lo:[0,0,1] neg_hi:[0,0,1]")
            o.append(f"v_pk_fma_f32 {t2}, {i}, {c}, {t2} neg_lo:[1,0,1] neg_hi:[1,0,1]")
        else:
            o.append(f"v_pk_fma_f32 {t1}, {r}, {c}, {t1}")
            o.append(f"v_pk_fma_f32 {t2}, {i}, {c}, {t2} neg_lo:[0,0,1] neg_hi:[0,0,1]")
        o.append(cv(dr+k, q)); o.append(cv(di+k, q+2))
    return o

def stage_h(a):
    l = vLANE; t = vT
    a(f"""
    v_lshrrev_b32 v{t}, 5, v{l}
    v_lshlrev_b32 v{t}, 8, v{t}
    v_bfe_u32 v{t+1}, v{l}, 2, 2
    v_lshl_add_u32 v{t}, v{t+1}, 6, v{t}
    v_bfe_u32 v{t+1}, v{l}, 4, 1
    v_lshl_add_u32 v{t}, v{t+1}, 5, v{t}
    v_and_b32 v{t+1}, 3, v{l}
    v_lshl_add_u32 v{t}, v{t+1}, 3, v{t}
    v_add_u32 v{t}, s{sT4}, v{t}
    @vm H
    """)
    s = []
    for rr in range(3):
        for q in range(4):
            d = vHX + 8*rr + 2*q
            s.append(f"ds_read_b64_tr_b16 v[{d}:{d+1}], v{t} offset:{rr*2048 + q*512}")
    T = lambda rr, c: vHT + 32*rr + 16*c
    for rr in range(2):
        for c, F in ((0, vF32C), (1, vF32S)):
            for jj in range(2):
                s.append(f"{M32} {vr(T(rr,c),16)}, {vr(vHX+8*rr+4*jj,4)}, {vr(F+4*jj,4)}, {vr(T(rr,c),16) if jj else 0}")
    g = vU
    for k in range(8):
        for rr in range(2):
            s.append(f"v_dot2_f32_bf16 v{g+rr}, v{vHX+8*rr+k}, v{vHG+k}, {'v%d' % (g+rr) if k else 0}")
    s += [f"v_permlane32_swap_b32 v{g}, v{g+1}", f"v_add_f32 v{g}, v{g}, v{g+1}"]
    n = vHTMP
    for rr in range(2):
        s.append(f"v_pk_add_f32 {vr(n+2*rr,2)}, {vr(T(rr,0),2)}, {vr(T(rr,0)+2,2)}")
    dpp = ["quad_perm:[1,0,3,2]", "quad_perm:[2,3,0,1]", "row_half_mirror", "row_mirror"]
    for k in range(2, 8):
        for rr in range(2):
            s.append(f"v_pk_add_f32 {vr(n+2*rr,2)}, {vr(n+2*rr,2)}, {vr(T(rr,0)+2*k,2)}")
        if k - 2 < 4: s.append(f"v_add_f32_dpp v{g}, v{g}, v{g} {dpp[k-2]} row_mask:0xf bank_mask:0xf")
    s += [f"v_mov_b32 v{g+1}, v{g}", f"v_sub_f32 v{n}, v{n}, v{n+1}", f"v_sub_f32 v{n+2}, v{n+2}, v{n+3}",
          f"v_permlane16_swap_b32 v{g}, v{g+1}", f"v_permlane32_swap_b32 v{n}, v{n+2}",
          f"v_add_f32 v{g}, v{g}, v{g+1}", f"v_add_f32 v{n}, v{n}, v{n+2}",
          cv(g, g, g), f"v_readlane_b32 s{sT}, v{n}, 0", f"v_readlane_b32 s{sT2}, v{n}, 32",
          f"v_and_b32 v{g}, 0xffff0000, v{g}", f"v_mul_f32 v{g}, {f32hex(-math.log2(math.e))}, v{g}",
          f"v_exp_f32 v{g}, v{g}", f"v_add_f32 v{g}, 1.0, v{g}", f"v_rcp_f32 v{g}, v{g}",
          cv(g, g, g), f"v_and_b32 v{g}, 0xffff0000, v{g}"]
    P = [vHX, T(0, 0)]
    for rr in range(2):
        s += twiddle(T(rr,0), T(rr,1), vHTC, vHTS, P[rr], P[rr]+8, vHTMP, True)
        Z = vHZ + 16*rr
        for i, (Ac, off) in enumerate(((vH2C, 0), (vH2C+4, 4), (vH2S, 8), (vH2S+4, 12))):
            s.append(f"{M32} {vr(Z,16)}, {vr(Ac,4)}, {vr(P[rr]+off,4)}, {vr(Z,16) if i else 0}")
    s += [f"s_lshl_b32 s{sCNT}, s{sWAVE}, 12", f"s_add_u32 s{sCNT}, s{sCNT}, {LDS_HTR}", f"v_add_u32 v{t}, s{sCNT}, v{vL16}",
          f"s_lshl_b32 s{sCNT}, s{sWAVE}, 10", f"s_add_u32 s{sCNT}, s{sCNT}, {LDS_HTR}", f"v_lshl_add_u32 v{t+1}, v{l}, 2, s{sCNT}",
          f"s_bfe_u32 s{sCNT}, s2, 0x20002", f"v_and_b32 v{t+2}, 3, v{l}", f"v_xor_b32 v{t+2}, s{sCNT}, v{t+2}", f"v_lshlrev_b32 v{t+2}, 4, v{t+2}",
          f"v_lshrrev_b32 v{t+3}, 2, v{l}", f"v_lshl_add_u32 v{t+2}, v{t+3}, 14, v{t+2}",
          f"v_lshrrev_b32 v{t+3}, 5, v{l}", f"v_lshlrev_b32 v{t+3}, 7, v{t+3}"]
    s += [f"v_writelane_b32 v{vHZ+1}, s{sT}, 0", f"v_writelane_b32 v{vHZ+17}, s{sT2}, 0"]
    for gq in range(4):
        for i in range(4): s.append(cv(vHX+4*gq+i, vHZ+4*gq+i, vHZ+16+4*gq+i))
        s.append(f"ds_write_b128 v{t}, {vr(vHX+4*gq,4)} offset:{gq*1024}")
    s += ["s_waitcnt lgkmcnt(0)", "s_barrier"]
    for rd in range(4):
        for hw in range(2):
            s.append(f"ds_read2st64_b32 {vr(vHZ+4*rd+2*hw,2)}, v{t+1} offset0:{rd + 32*hw} offset1:{rd + 32*hw + 16}")
    s += [f"s_lshl_b32 s{sT}, s{sWAVE}, 20", f"s_lshl_b32 s{sT2}, s2, 6", f"s_add_u32 s{sT}, s{sT}, s{sT2}", f"s_add_u32 s{sT}, s{sT}, {WS_Z}",
          f"s_lshl_b32 s{sT3}, s{sT3}, 2", f"s_add_u32 s{sT3}, s{sT3}, {WS_G}",
          "s_waitcnt lgkmcnt(0)", "s_barrier"]
    a.ext(LgkmTracker().feed(s))
def stage_h_stores(a):
    t = vT
    for rd in range(4):
        a(f"buffer_store_dwordx4 {vr(vHZ+4*rd,4)}, v{t+2}, {WS()}, s{sT} offen sc1 ;T=Z")
        if rd < 3: a(f"s_add_u32 s{sT}, s{sT}, {16*16384}")
    a("s_mov_b32 exec_lo, 1"); a("s_mov_b32 exec_hi, 1")
    a(f"buffer_store_dword v{vU}, v{t+3}, {WS()}, s{sT3} offen sc1 ;T=Z")
    a("s_mov_b64 exec, -1")
    a(f"v_mov_b32 v{vU}, 1"); a(f"v_mov_b32 v{vU+1}, 0")

vWOG, vWOA = 4, 5
vGATE = 9
vS, vNM, vO, vL, vONE, vIDX, vM = 20, 84, 148, 212, 228, 232, 233
def wo_setup(a):
    l = vLANE; t = vT
    a(f"""
    v_lshrrev_b32 v{t}, 3, v{l}
    v_lshrrev_b32 v{t+1}, 4, v{l}
    v_lshlrev_b32 v{t+1}, 1, v{t+1}
    v_and_b32 v{t+2}, 7, v{l}
    v_xor_b32 v{t+1}, v{t+1}, v{t+2}
    v_lshlrev_b32 v{t+1}, 4, v{t+1}
    v_lshl_add_u32 v{vWOG}, v{t}, 11, v{t+1}
    v_lshrrev_b32 v{t}, 5, v{l}
    v_lshlrev_b32 v{t}, 11, v{t}
    v_bfe_u32 v{t+1}, v{l}, 2, 3
    v_lshl_add_u32 v{t}, v{t+1}, 7, v{t}
    v_bfe_u32 v{t+1}, v{l}, 3, 2
    v_lshl_add_u32 v{t}, v{t+1}, 5, v{t}
    v_and_b32 v{t+1}, 3, v{l}
    v_lshl_add_u32 v{vWOA}, v{t+1}, 3, v{t}
    v_xor_b32 v{vWOA+1}, 32, v{vWOA}
    v_xor_b32 v{vWOA+2}, 64, v{vWOA}
    v_xor_b32 v{vWOA+3}, 96, v{vWOA}
    s_lshl_b32 s{sWOO}, s{sWAVE}, 14
    s_lshl_b32 s{sT}, s{sB}, 7
    s_add_u32 s{sWOO}, s{sWOO}, s{sT}
    s_lshl_b32 s{sWOM}, s{sWAVE}, 10
    """)
def mid(a):
    l = vLANE; t = vT; f = vFR; u0 = vU
    wo_setup(a)
    a(f"""
    s_add_u32 m0, s{sWOM}, {LDS_W31}
    s_add_u32 s{sT}, s{sWOO}, {31*65536}
    buffer_load_dwordx4 v{vWOG}, s[{sWO}:{sWO+3}], s{sT} offen lds
    """)
    poll(a, [f"buffer_load_dword v{t}, v{vU+1}, s[{sDBG}:{sDBG+3}], 0 offen sc1"],
         [f"v_readfirstlane_b32 s{sT}, v{t}", f"s_cmp_ge_u32 s{sT}, 256"])
    a("@vmset")
    a(f"""
    s_lshl_b32 s{sT}, s2, 14
    s_lshl_b32 s{sT2}, s{sWAVE}, 12
    s_add_u32 s{sT}, s{sT}, s{sT2}
    s_add_u32 s{sT}, s{sT}, {WS_Z}
    s_add_u32 m0, s{sT2}, {LDS_Z}
    """)
    for i in range(4): a(f"buffer_load_dwordx4 v{vL16}, {WS()}, s{sT} offen offset:{i*1024} sc1 lds ;T=Z")
    a(f"""
    s_lshl_b32 s{sT}, s{sB}, 9
    s_lshl_b32 s{sT2}, s{sWR}, 8
    s_add_u32 s{sT}, s{sT}, s{sT2}
    s_add_u32 s{sT}, s{sT}, {WS_G}
    v_and_b32 v{t}, 31, v{l}
    v_lshlrev_b32 v{t}, 2, v{t}
    buffer_load_dword v{vGATE}, v{t}, {WS()}, s{sT} offen sc1 ;T=G
    buffer_load_dword v{vGATE+1}, v{t}, {WS()}, s{sT} offen offset:128 sc1 ;T=G
    """)
    a(f"""
    s_lshl_b32 s{sT}, s{sWAVE}, 13
    s_add_u32 s{sT}, s{sT}, {LDS_KVX}
    s_lshl_b32 s{sT2}, s{sWAVE}, 12
    s_add_u32 s{sT2}, s{sT2}, {LDS_QX}
    v_bfe_u32 v{t+4}, v{l}, 4, 1
    v_lshlrev_b32 v{t+4}, 10, v{t+4}
    v_lshrrev_b32 v{t+1}, 5, v{l}
    v_lshl_add_u32 v{t+4}, v{t+1}, 9, v{t+4}
    v_bfe_u32 v{t+1}, v{l}, 2, 2
    v_lshl_add_u32 v{t}, v{t+1}, 7, v{t+4}
    v_and_b32 v{t+1}, 3, v{l}
    v_lshl_add_u32 v{t}, v{t+1}, 4, v{t}
    v_add_u32 v{t}, s{sT}, v{t}
    v_and_b32 v{t+3}, 15, v{l}
    v_lshl_add_u32 v{t+2}, v{t+3}, 4, v{t+4}
    v_add_u32 v{t+2}, s{sT2}, v{t+2}
    v_lshrrev_b32 v{t+1}, 4, v{l}
    v_lshlrev_b32 v{t+1}, 9, v{t+1}
    v_lshl_add_u32 v{t+1}, v{t+3}, 4, v{t+1}
    v_add_u32 v{t+1}, s{sT}, v{t+1}
    v_add_u32 v{t+3}, s{sT}, v{vL16}
    s_lshl_b32 s{sKVB}, s{sHEAD}, 18
    s_lshl_b32 s{sT}, s{sWR}, 13
    s_add_u32 s{sKVB}, s{sKVB}, s{sT}
    s_lshl_b32 s{sKVN}, s{sB}, 14
    s_add_u32 s{sKVO}, s{sKVB}, s{sKVN}
    s_add_u32 s{sT}, s{sKVO}, 4096
    s_mov_b32 s{sCNT}, {f32hex(QSCALE)}
    """)
    s = []; n = 0
    for u in range(4):
        d = f + 4*n; n += 1
        for th in range(2): s += [cv(d+2*th, acc(u,1,th)), cv(d+2*th+1, acc(u,1,th)+2)]
        s.append(f"ds_write_b128 v{t}, {vr(d,4)} offset:{(u>>1)*4096 + (u&1)*64}")
    for T in range(2):
        for th in range(2):
            d = f + 4*n; n += 1
            for b in range(2): s += [cv(d+2*b, acc(2*T+b,2,th)), cv(d+2*b+1, acc(2*T+b,2,th)+2)]
            s.append(f"ds_write_b128 v{t+1}, {vr(d,4)} offset:{T*4096 + 2048 + th*256}")
    for i in range(8): s.append(f"ds_read_b128 {ar(aKV+4*i,4)}, v{t+3} offset:{i*1024}")
    st = [f"buffer_store_dwordx4 {ar(aKV+4*i,4)}, v{vL16}, {WS()}, s{sKVO if i < 4 else sT} offen offset:{(i%4)*1024} sc1 ;T=KV" for i in range(8)]
    for u in range(4):
        d = f + 4*n; n += 1
        for th in range(2):
            for r in range(4): s.append(f"v_mul_f32 v{acc(u,0,th)+r}, s{sCNT}, v{acc(u,0,th)+r}")
            s += [cv(d+2*th, acc(u,0,th)), cv(d+2*th+1, acc(u,0,th)+2)]
            s.append(st[2*u+th])
        s.append(f"ds_write_b128 v{t+2}, {vr(d,4)} offset:{(u>>1)*2048 + (u&1)*256}")
    s += [f"s_xor_b32 s{sT}, s{sT2}, 8192", f"v_add_u32 v{t}, s{sT2}, v{vL16}", f"v_add_u32 v{t+1}, s{sT}, v{vL16}",
          f"s_lshl_b32 s{sT}, s{sWH}, 13", f"s_add_u32 s{sT}, s{sT}, {LDS_KVX}", f"v_add_u32 v{t+2}, s{sT}, v{vL16}",
          f"v_bfe_u32 v{t+3}, v{l}, 2, 2", f"s_lshl_b32 s{sT}, s{sWR}, 1", f"v_xor_b32 v{t+3}, s{sT}, v{t+3}", f"v_lshlrev_b32 v{t+3}, 4, v{t+3}",
          f"v_lshl_add_u32 v{t+3}, v{l}, 6, v{t+3}", f"v_xor_b32 v{t+4}, 16, v{t+3}",
          "@vm Z | lgkmcnt(0)", "s_barrier"]
    ZR, ZI, K0 = 100, 116, 132
    for k in range(4):
        s.append(f"ds_read_b128 {vr(ZR+4*k,4)}, v{t+3} offset:{LDS_Z + k*4096}")
        s.append(f"ds_read_b128 {vr(ZI+4*k,4)}, v{t+4} offset:{LDS_Z + k*4096}")
    for i in range(2): s.append(f"ds_read_b128 {vr(K0+4*i,4)}, v{t+2} offset:{i*1024}")
    for i in range(8): s.append(f"ds_read_b128 {ar(aQ+4*i,4)}, v{t + (i>>2)} offset:{(i%4)*1024}")
    s.append(f"v_add_u32 v{t}, {LDS_W31 - 4096}, v{vWOA}")
    for n_ in range(4):
        if n_: s.append(f"v_xor_b32 v{t+n_}, {32*n_}, v{t}")
        for h in range(2): s.append(f"ds_read_b64_tr_b16 {ar(aW31+4*n_+2*h,2)}, v{t+n_} offset:{4096 + h*1024}")
    s += ["s_waitcnt lgkmcnt(0)", "s_barrier"]
    a.ext(LgkmTracker().feed(s))
    return ZR, ZI, K0

def stage_s(a, ZR, ZI):
    t = vT; UR, UI, P, Y, TMP, SAVE = 20, 36, 52, 68, 84, 148
    Lp = a.label("ss"); Lg = a.label("ssg"); Ld = a.label("ssd")
    a(f"s_mov_b32 s{sYC}, s{sCOL}")
    a(f"s_cmp_lg_u32 s{sCOL}, 0"); a(f"s_cbranch_scc1 {Lp}")
    for i in range(16): a(f"v_mov_b32 v{SAVE+i}, v{ZI+i}"); a(f"v_mov_b32 v{ZI+i}, 0")
    a("s_nop 1")
    a(f"{Lp}:")
    for k in range(4): a(f"{M32} {vr(UR,16)}, {vr(ZR+4*k,4)}, {ar(aS1C+4*k,4)}, {vr(UR,16) if k else 0}")
    for k in range(4):
        a(f"{M32} {vr(UI,16)}, {vr(ZI+4*k,4)}, {ar(aS1C+4*k,4)}, {vr(UI,16) if k else 0}")
        for i in range(4): a(f"v_xor_b32 v{ZR+4*k+i}, s{sONE}, v{ZR+4*k+i}")
    for k in range(4): a(f"{M32} {vr(UR,16)}, {vr(ZI+4*k,4)}, {ar(aS1S+4*k,4)}, {vr(UR,16)}")
    for k in range(4): a(f"{M32} {vr(UI,16)}, {vr(ZR+4*k,4)}, {ar(aS1S+4*k,4)}, {vr(UI,16)}")
    a(f"s_lshl_b32 s{sT}, s{sYC}, 12"); a(f"s_lshl_b32 s{sT2}, s{sWH}, 11"); a(f"s_add_u32 s{sT}, s{sT}, s{sT2}"); a(f"s_add_u32 s{sT}, s{sT}, {WS_Y}")
    a.ext(twiddle(UR, UI, vSTC, vSTS, P, P+8, TMP, False))
    for i, (F, off) in enumerate(((vF32C, 0), (vF32C+4, 4), (vF32S, 8), (vF32S+4, 12))):
        a(f"{M32} {vr(Y,16)}, {vr(P+off,4)}, {vr(F,4)}, {vr(Y,16) if i else 0}")
    for k in range(8): a(cv(UR+k, Y+2*k))
    for pr in range(2):
        for d in range(2): a(f"v_permlane32_swap_b32 v{UR+4*pr+d}, v{UR+4*pr+2+d}")
        a(f"buffer_store_dwordx4 {vr(UR+4*pr,4)}, v{vL16}, {WS()}, s{sT} offen offset:{pr*1024} sc1 ;T=Y")
    a(f"s_cmp_lg_u32 s{sYC}, 0"); a(f"s_cbranch_scc1 {Ld}")
    a(f"s_mov_b32 s{sYC}, 512")
    for i in range(16): a(f"v_mov_b32 v{ZR+i}, v{SAVE+i}")
    a("s_nop 1"); a(f"s_branch {Lp}")
    a(f"{Ld}:")

def Sr(i): return vS + 16*i
def qk(i, kb, C, kk="a"):
    K = lambda j: vr(kb+4*j, 4, kk)
    return [f"{M32} {vr(Sr(i),16)}, {K(0)}, {ar(aQ+8*i,4)}, {C}", f"{M32} {vr(Sr(i),16)}, {K(1)}, {ar(aQ+8*i+4,4)}, {vr(Sr(i),16)}"]
def rowmax(i, first):
    m = vM + i; S = Sr(i); o = []
    if first: o.append(f"v_max3_f32 v{m}, v{S}, v{S+1}, v{S+1}")
    else: o.append(f"v_max3_f32 v{m}, v{S}, v{S+1}, v{m}")
    for k in range(1, 8): o.append(f"v_max3_f32 v{m}, v{S+2*k}, v{S+2*k+1}, v{m}")
    return o
def max_halves(a):
    t = vT
    for i in range(4): a(f"v_mov_b32 v{t+i}, v{vM+i}")
    for i in range(4): a(f"v_permlane32_swap_b32 v{vM+i}, v{t+i}")
    for i in range(4): a(f"v_max_f32 v{vM+i}, v{vM+i}, v{t+i}")
def pv(i, half, buf): return f"v_smfmac_f32_32x32x32_bf16 {vr(vO+16*i,16)}, {ar(aKV+16*buf+8+4*half,4)}, {vr(Sr(i)+8*half,8)}, v{vIDX}"
def sm(i, half): return f"v_smfmac_f32_16x16x64_bf16 {vr(vL+4*i,4)}, {vr(vONE,4)}, {vr(Sr(i)+8*half,8)}, v{vIDX}"
def att_tile(n):
    o = []
    ld = [f"buffer_load_dwordx4 {ar(aKV+16*((n+2)%4)+4*i,4)}, v{vL16}, {WS()}, s{sKVO} offen offset:{i*1024} sc1 ;T=K{(n+2)%4}" for i in range(4)]
    for i in range(4):
        e = [f"v_exp_f32 v{Sr(i)+k}, v{Sr(i)+k}" for k in range(16)]
        ni = (i+1) % 4; nb = n % 4 if i < 3 else (n+1) % 4
        q0, q1 = qk(ni, aKV+16*nb, vr(vNM+16*ni, 16))
        pi = (i-1) % 4; pb = n % 4 if i > 0 else (n-1) % 4
        a0, a1, a2, a3, a4, a5 = [], [], [], [ld[i]], [], []
        if i == 0:
            if n % 2 == 0:
                a0 = [f"s_add_u32 s{sKVN}, s{sKVN}, 16384"]; a1 = [f"s_and_b32 s{sKVN}, s{sKVN}, 0x3ffff"]; a2 = [f"s_add_u32 s{sKVO}, s{sKVB}, s{sKVN}"]
            else: a0 = [f"s_add_u32 s{sKVO}, s{sKVO}, 4096"]
        if i == 1:
            a5 = [f"buffer_load_dwordx4 v{vWOG}, s[{sWO}:{sWO+3}], s{sT3} offen lds ;T=W"]
        if i == 2:
            a0 = ["s_add_u32 m0, m0, 4096"]; a1 = [f"s_add_u32 s{sT3}, s{sT3}, 65536"]; a5 = [f"@vm K{(n+1)%4}"]
        o += [q0] + a0 + e[0:3] + [q1] + a1 + e[3:6] + [pv(pi,1,pb)] + a2 + e[6:9] + [sm(pi,1)] + a3 + e[9:11] + [pv(i,0,n%4)] + a4 + e[11:14] + [sm(i,0)] + a5 + e[14:16]
    return o
def attention(a, K0):
    l = vLANE; t = vT
    for i in range(4): a.ext(qk(i, K0, "0", "v"))
    a("@vm KV"); set_flag(a, 1)
    a(f"""
    v_mov_b32 v{vIDX}, 0xdddddddd
    v_mov_b32 v{t+1}, 0x3f803f80
    v_and_b32 v{t}, 15, v{l}
    v_cmp_eq_u32 vcc, 0, v{t}
    v_cndmask_b32 v{vONE}, 0, v{t+1}, vcc
    v_cndmask_b32 v{vONE+1}, 0, v{t+1}, vcc
    v_cmp_eq_u32 vcc, 4, v{t}
    v_cndmask_b32 v{vONE+2}, 0, v{t+1}, vcc
    v_cndmask_b32 v{vONE+3}, 0, v{t+1}, vcc
    s_mov_b32 s{sPASS}, 0
    """)
    for i in range(4): a.ext(rowmax(i, True))
    max_halves(a)
    stamp(a)
    a(f"""
    s_lshl_b32 s{sT}, s{sHEAD}, 1
    s_add_u32 s{sT}, s{sT}, s{sWR}
    s_lshl_b32 s{sT}, s{sT}, 7
    s_add_u32 s{sT}, s{sT}, {WS_FB}
    v_and_b32 v{t}, 15, v{l}
    v_lshlrev_b32 v{t}, 2, v{t}
    """)
    poll(a, [f"buffer_load_dword v{t+1}, v{t}, {WS()}, s{sT} offen sc1"], [f"v_cmp_eq_u32 vcc, 1, v{t+1}", "s_cmp_eq_u64 vcc, exec"])
    set_flag(a, 10)
    stamp(a)
    a("L_att:")
    for i in range(4):
        a(f"v_sub_f32 v{vNM+16*i}, 0, v{vM+i}"); a(f"v_sub_f32 v{vNM+16*i+1}, 0, v{vM+i}")
        for k in range(1, 8): a(f"v_mov_b64 {vr(vNM+16*i+2*k,2)}, {vr(vNM+16*i,2)}")
        if i == 1: a.ext(qk(0, aKV, vr(vNM, 16)))
    for k in range(40): a(f"v_mov_b64 {vr(vO+2*k,2)}, 0")
    for k in range(4): a(f"v_mov_b64 {vr(Sr(3)+8+2*k,2)}, 0"); a(f"v_accvgpr_write_b32 a{aKV+60+k}, 0")
    a(f"s_mov_b32 m0, s{sWOM}"); a(f"s_mov_b32 s{sT3}, s{sWOO}"); a(f"s_mov_b32 s{sCNT}, 8")
    a(".p2align 6"); a("L_attloop:")
    a("@vmset K1*2 W K1*2")
    for n in range(4): a.ext(att_tile(n))
    a(f"s_sub_u32 s{sCNT}, s{sCNT}, 1"); a(f"s_cmp_lg_u32 s{sCNT}, 0"); a("s_cbranch_scc1 L_attloop")
    a(pv(3, 1, 3)); a(sm(3, 1))
    stamp(a)
    a(f"""
    s_lshl_b32 s{sT}, s{sWAVE}, 13
    s_add_u32 s{sT}, s{sT}, {LDS_OX}
    v_add_u32 v{t}, s{sT}, v{vL16}
    s_xor_b32 s{sT}, s{sT}, 16384
    v_add_u32 v{t+1}, s{sT}, v{vL16}
    s_add_u32 s{sT}, s{sWOM}, {LDS_LX}
    v_lshl_add_u32 v{t+2}, v{l}, 3, s{sT}
    v_xor_b32 v{t+3}, 2048, v{t+2}
    v_and_b32 v{t+4}, 3, v{l}
    v_lshlrev_b32 v{t+4}, 10, v{t+4}
    v_add_u32 v{t+4}, {LDS_LX + 512}, v{t+4}
    s_mov_b32 s{sT2}, {f32hex(2.0**80)}
    """)
    ck = Sr(0)
    a(f"v_pk_mul_f32 {vr(ck,2)}, {vr(vO,2)}, 0")
    for k in range(1, 32): a(f"v_pk_fma_f32 {vr(ck,2)}, {vr(vO+2*k,2)}, 0, {vr(ck,2)}")
    a(f"v_add_f32 v{ck}, v{ck}, v{ck+1}")
    for i in range(4): a(f"v_add_f32 v{ck}, v{ck}, v{vL+4*i}")
    a(f"""
    v_cmp_gt_f32 vcc, s{sT2}, v{ck}
    v_mov_b32 v{vL+9}, v{vL+12}
    s_cmp_eq_u64 vcc, exec
    s_cselect_b32 s{sT}, 0, 1
    s_andn2_b32 s{sT}, s{sT}, s{sPASS}
    v_mov_b32 v{ck}, s{sT}
    s_waitcnt vmcnt(0)
    ds_write_b64 v{t+2}, {vr(vL+8,2)}
    ds_write_b32 v{t+2}, v{ck} offset:512
    """)
    s = [f"ds_write_b128 v{t}, {vr(vO+32+4*k,4)} offset:{k*1024}" for k in range(8)]
    s += ["s_waitcnt lgkmcnt(0)", "s_barrier", f"ds_read_b32 v{ck}, v{t+4}", f"ds_read_b64 {vr(vL+8,2)}, v{t+3}"]
    s += [f"ds_read_b128 {vr(vO+32+4*k,4)}, v{t+1} offset:{k*1024}" for k in range(8)]
    s += [f"v_cmp_ne_u32 vcc, 0, v{ck}", "s_cmp_lg_u64 vcc, 0", "s_cbranch_scc1 L_fallback"]
    sc = Sr(1)
    s += [f"v_add_f32 v{sc}, v{vL}, v{vL+8}", f"v_add_f32 v{sc+2}, v{vL+4}, v{vL+9}",
          f"v_mov_b32 v{sc+1}, v{sc}", f"v_mov_b32 v{sc+3}, v{sc+2}",
          f"v_bfe_u32 v{t}, v{l}, 4, 1", f"v_lshlrev_b32 v{t}, 10, v{t}",
          f"v_permlane32_swap_b32 v{sc}, v{sc+1}", f"v_permlane32_swap_b32 v{sc+2}, v{sc+3}",
          f"v_rcp_f32 v{sc}, v{sc}", f"v_rcp_f32 v{sc+2}, v{sc+2}",
          f"v_lshrrev_b32 v{t+2}, 5, v{l}", f"v_lshl_add_u32 v{t}, v{t+2}, 8, v{t}",
          f"v_mul_f32 v{sc}, v{sc}, v{vGATE}", f"v_mul_f32 v{sc+2}, v{sc+2}, v{vGATE+1}",
          f"v_and_b32 v{t+2}, 15, v{l}", f"v_lshl_add_u32 v{t}, v{t+2}, 4, v{t}",
          f"v_mov_b32 v{sc+1}, v{sc}", f"v_mov_b32 v{sc+3}, v{sc+2}",
          f"s_lshl_b32 s{sT}, s{sB}, 2", f"s_lshl_b32 s{sT2}, s{sWR}, 1", f"s_add_u32 s{sT}, s{sT}, s{sT2}", f"s_lshl_b32 s{sT}, s{sT}, 16",
          f"s_lshl_b32 s{sT2}, s{sHEAD}, 11", f"s_add_u32 s{sT}, s{sT}, s{sT2}", f"s_add_u32 s{sT}, s{sT}, {WS_O}", f"s_add_u32 s{sT2}, s{sT}, 65536"]
    pk = Sr(2)
    for i in range(2):
        for j in range(2):
            for k in range(4):
                o_ = vO + 16*i + 8*j + 2*k
                s.append(f"v_pk_mul_f32 {vr(o_,2)}, {vr(o_,2)}, {vr(sc+2*i,2)}")
                s.append(f"v_pk_fma_f32 {vr(o_,2)}, {vr(o_+32,2)}, {vr(sc+2*i,2)}, {vr(o_,2)}")
                s.append(cv(pk+8*i+4*j+k, o_))
            s.append(f"buffer_store_dwordx4 {vr(pk+8*i+4*j,4)}, v{t}, {WS()}, s{sT2 if i else sT} offen offset:{j*512} sc1 ;T=O")
    a.ext(LgkmTracker().feed(s))

def fallback(a):
    t = vT; l = vLANE; K = vO
    a("L_fallback:")
    a("s_waitcnt lgkmcnt(0)"); a("s_barrier")
    a(f"s_mov_b32 s{sPASS}, 1"); a(f"s_mov_b32 s{sCNT}, 0")
    a("L_fbloop:")
    a(f"""
    s_lshr_b32 s{sT}, s{sCNT}, 1
    s_lshl_b32 s{sT}, s{sT}, 14
    s_and_b32 s{sT2}, s{sCNT}, 1
    s_lshl_b32 s{sT2}, s{sT2}, 12
    s_add_u32 s{sT}, s{sT}, s{sT2}
    s_add_u32 s{sT}, s{sT}, s{sKVB}
    buffer_load_dwordx4 {vr(K,4)}, v{vL16}, {WS()}, s{sT} offen sc1
    buffer_load_dwordx4 {vr(K+4,4)}, v{vL16}, {WS()}, s{sT} offen offset:1024 sc1
    s_waitcnt vmcnt(0)
    """)
    for i in range(4): a.ext(qk(i, K, "0", "v"))
    for i in range(4): a.ext(rowmax(i, False))
    a(f"s_add_u32 s{sCNT}, s{sCNT}, 1"); a(f"s_cmp_lt_u32 s{sCNT}, 32"); a("s_cbranch_scc1 L_fbloop")
    max_halves(a)
    a(f"""
    s_lshl_b32 s{sT}, s{sWAVE}, 13
    s_add_u32 s{sT}, s{sT}, {LDS_OX}
    v_add_u32 v{t}, s{sT}, v{vL16}
    s_xor_b32 s{sT}, s{sT}, 16384
    v_add_u32 v{t+1}, s{sT}, v{vL16}
    """)
    for i in range(4): a(f"v_mov_b32 v{K+i}, v{vM+i}")
    a(f"ds_write_b128 v{t}, {vr(K,4)}"); a("s_waitcnt lgkmcnt(0)"); a("s_barrier")
    a(f"ds_read_b128 {vr(K+4,4)}, v{t+1}"); a("s_waitcnt lgkmcnt(0)"); a("s_barrier")
    for i in range(4): a(f"v_max_f32 v{vM+i}, v{vM+i}, v{K+4+(i^2)}")
    a("s_branch L_att")

vA3, vOF, vWF, vDG = 20, 84, 52, 148
def phase3(a):
    l = vLANE; t = vT; g = vGATE
    a(f"""
    s_cmp_ge_u32 s{sB}, 8
    s_cselect_b32 s{sMIR}, 1, 0
    s_cselect_b64 vcc, -1, 0
    s_lshl_b32 s{sT}, s{sB}, 6
    v_add_u32 v{t}, s{sT}, v{l}
    v_sub_u32 v{t+1}, 1024, v{t}
    v_cndmask_b32 v{t}, v{t}, v{t+1}, vcc
    v_lshlrev_b32 v{t}, 3, v{t}
    s_mov_b32 s{sT}, {WS_FC}
    """)
    poll(a, [f"buffer_load_dwordx2 {vr(t+2,2)}, v{t}, {WS()}, s{sT} offen sc1"],
         [f"v_and_b32 v{t+2}, v{t+2}, v{t+3}", f"v_cmp_eq_u32 vcc, 1, v{t+2}", "s_cmp_eq_u64 vcc, exec"])
    a("@vmset")
    set_flag(a, 4)
    stamp(a)
    a(f"""
    s_lshl_b32 s{sT}, s{sA}, 2
    s_add_u32 s{sOO}, s{sT}, s{sWAVE}
    s_sub_u32 s{sT}, 63, s{sOO}
    s_cmp_eq_u32 s{sMIR}, 1
    s_cselect_b64 vcc, -1, 0
    s_cselect_b32 s{sT}, s{sT}, s{sOO}
    s_cselect_b32 s{sT4}, -1, 1
    s_lshl_b32 s{sT4}, s{sT4}, 16
    s_add_u32 s{sT3}, s{sT}, 1
    s_and_b32 s{sT3}, s{sT3}, 63
    s_and_b32 s{sT2}, s{sT}, 1
    s_lshl_b32 s{sT2}, s{sT2}, 11
    s_lshr_b32 s{sT}, s{sT}, 1
    s_lshl_b32 s{sT}, s{sT}, 4
    s_add_u32 s{sT}, s{sT}, s{sT2}
    s_add_u32 s{sT}, s{sT}, {WS_Y}
    s_and_b32 s{sT2}, s{sT3}, 1
    s_lshl_b32 s{sT2}, s{sT2}, 11
    s_lshr_b32 s{sT3}, s{sT3}, 1
    s_lshl_b32 s{sT3}, s{sT3}, 4
    s_add_u32 s{sT3}, s{sT3}, s{sT2}
    s_add_u32 s{sT3}, s{sT3}, {WS_Y}
    v_and_b32 v{t+4}, 15, v{l}
    s_lshl_b32 s{sT2}, s{sB}, 6
    v_add_u32 v{t}, s{sT2}, v{t+4}
    v_sub_u32 v{t+1}, 1024, v{t}
    v_cndmask_b32 v{t}, v{t}, v{t+1}, vcc
    v_lshlrev_b32 v{t}, 12, v{t}
    v_lshrrev_b32 v{t+5}, 4, v{l}
    v_lshl_add_u32 v{t}, v{t+5}, 9, v{t}
    v_add_u32 v{t+1}, s{sT4}, v{t}
    v_add_u32 v{t+2}, s{sT4}, v{t+1}
    v_add_u32 v{t+3}, s{sT4}, v{t+2}
    """)
    Y = 156
    for n in range(4): a(f"buffer_load_dwordx4 {vr(Y+4*n,4)}, v{t+n}, {WS()}, s{sT} offen sc1 ;T=Y")
    Ln = a.label("nomir")
    a(f"s_cmp_eq_u32 s{sMIR}, 0"); a(f"s_cbranch_scc1 {Ln}")
    a("s_mov_b64 exec, 0xffff")
    for n in range(4): a(f"buffer_load_dword v{Y+16+n}, v{t+n}, {WS()}, s{sT3} offen sc1 ;T=Y")
    a(f"s_mov_b32 s{sT2}, 0xffff")
    a("s_waitcnt vmcnt(0)")
    for n in range(4): a(f"v_bfi_b32 v{Y+4*n}, s{sT2}, v{Y+16+n}, v{Y+4*n}")
    a("s_mov_b64 exec, -1")
    a(f"{Ln}:")
    a(f"""
    s_lshl_b32 s{sT}, s{sOO}, 7
    s_add_u32 s{sT}, s{sT}, {WS_G}
    v_lshlrev_b32 v{t}, 2, v{t+4}
    buffer_load_dword v{g}, v{t}, {WS()}, s{sT} offen sc1
    buffer_load_dword v{g+1}, v{t}, {WS()}, s{sT} offen offset:64 sc1
    s_waitcnt vmcnt(0)
    """)
    for u in range(2):
        a(f"""
        v_sub_f32 v{g+u}, 1.0, v{g+u}
        v_add_u32 v{t}, {16*u}, v{t+4}
        v_sub_u32 v{t+1}, 32, v{t}
        v_and_b32 v{t+1}, 31, v{t+1}
        s_cmp_eq_u32 s{sMIR}, 1
        s_cselect_b64 vcc, -1, 0
        v_cvt_pk_bf16_f32 v{g+u}, v{g+u}, 0
        v_cndmask_b32 v{t}, v{t}, v{t+1}, vcc
        v_and_b32 v{t+1}, 1, v{t}
        v_lshlrev_b32 v{t+1}, 4, v{t+1}
        v_lshlrev_b32 v{g+u}, v{t+1}, v{g+u}
        v_lshrrev_b32 v{t}, 1, v{t}
        v_lshlrev_b32 v{t+1}, 2, v{t+5}
        v_sub_u32 v{t}, v{t}, v{t+1}
        """)
        for d in range(4):
            a(f"v_cmp_eq_u32 vcc, {d}, v{t}"); a(f"v_cndmask_b32 v{vDG+4*u+d}, 0, v{g+u}, vcc")
    A3 = lambda n, u: vA3 + (n*2+u)*4
    for n in range(4):
        for u in range(2): a(f"{M16} {vr(A3(n,u),4)}, {vr(Y+4*n,4)}, {vr(vDG+4*u,4)}, 0")
    def wrd(hd):
        f = vWF + 16*(hd % 2)
        return [f"ds_read_b64_tr_b16 {vr(f+4*n+2*h,2)}, v{vWOA+n} offset:{(hd%16)*4096 + h*1024}" for n in range(4) for h in range(2)]
    lk = LgkmTracker(age=6)
    a.ext(lk.feed(wrd(0)))
    a(f"""
    s_lshl_b32 s{sT}, s{sA}, 1
    s_add_u32 s{sT}, s{sT}, s{sWR}
    s_lshl_b32 s{sT}, s{sT}, 7
    s_add_u32 s{sT}, s{sT}, {WS_FD}
    v_and_b32 v{t}, 31, v{l}
    v_lshlrev_b32 v{t}, 2, v{t}
    s_lshl_b32 s{sT3}, s{sOO}, 16
    s_add_u32 s{sT3}, s{sT3}, {WS_O}
    """)
    stamp(a)
    poll(a, [f"buffer_load_dword v{t+1}, v{t}, {WS()}, s{sT} offen sc1"], [f"v_cmp_eq_u32 vcc, 1, v{t+1}", "s_cmp_eq_u64 vcc, exec"])
    a("@vmset")
    stamp(a)
    DEP = 8
    def old(hd, u): return f"buffer_load_dwordx4 {vr(vOF+8*(hd%DEP)+4*u,4)}, v{vL16}, {WS()}, s{sT3} offen offset:{(hd%2)*2048 + u*1024} sc1 ;T=O{hd}"
    adv = f"s_add_u32 s{sT3}, s{sT3}, 4096"
    for hd in range(DEP-1):
        a(old(hd, 0)); a(old(hd, 1))
        if hd % 2: a(adv)
    for hd in range(32):
        f = vWF + 16*(hd % 2)
        W = (lambda n: vr(f+4*n, 4)) if hd < 31 else (lambda n: ar(aW31+4*n, 4))
        m = [f"{M16} {vr(A3(n,u),4)}, {W(n)}, {vr(vOF+8*(hd%DEP)+4*u,4)}, {vr(A3(n,u),4)}" for n in range(4) for u in ((0,1) if n % 2 == 0 else (1,0))]
        fill = {}
        if hd == 15: fill[0] = [f"v_add_u32 v{vWOA+n}, 0x10000, v{vWOA+n}" for n in range(4)]
        if hd + 1 < 31:
            for i, r in enumerate(wrd(hd+1)): fill.setdefault(i, []).append(r)
        nh = hd + DEP - 1
        if nh < 32:
            fill.setdefault(1, []).append(old(nh, 0)); fill.setdefault(5, []).append(old(nh, 1))
            if nh % 2: fill.setdefault(6, []).append(adv)
        a(f"@vm O{hd}")
        a.ext(lk.feed(interleave(m, fill)))
    stamp(a)
    a(f"""
    s_lshl_b32 s{sT}, s{sWAVE}, 13
    s_add_u32 s{sT}, s{sT}, {LDS_OX}
    s_xor_b32 s{sT}, s{sT}, 16384
    v_lshl_add_u32 v{t}, v{t+4}, 7, s{sT}
    v_bfe_u32 v{t+1}, v{l}, 4, 1
    v_lshl_add_u32 v{t}, v{t+1}, 3, v{t}
    v_lshrrev_b32 v{t+1}, 5, v{l}
    v_and_b32 v{t+2}, 7, v{l}
    v_xor_b32 v{t+1}, v{t+1}, v{t+2}
    v_lshl_add_u32 v{t}, v{t+1}, 4, v{t}
    v_lshrrev_b32 v{t+5}, 3, v{l}
    v_xor_b32 v{t+1}, v{t+5}, v{t+2}
    v_lshlrev_b32 v{t+1}, 4, v{t+1}
    v_lshl_add_u32 v{t+1}, v{t+5}, 7, v{t+1}
    v_add_u32 v{t+4}, s{sT}, v{t+1}
    v_lshlrev_b32 v{t+2}, 4, v{t+2}
    v_lshl_add_u32 v{t+5}, v{t+5}, 11, v{t+2}
    v_xor_b32 v{t+1}, 32, v{t}
    v_xor_b32 v{t+2}, 64, v{t}
    v_xor_b32 v{t+3}, 96, v{t}
    s_lshl_b32 s{sT}, s{sOO}, 16
    s_lshl_b32 s{sT2}, s{sB}, 7
    s_add_u32 s{sT}, s{sT}, s{sT2}
    """)
    s = []
    for n in range(4):
        for u in range(2):
            d = vWF + (n*2+u)*2
            s += [cv(d, A3(n,u)), cv(d+1, A3(n,u)+2), f"ds_write_b64 v{t+n}, {vr(d,2)} offset:{u*2048}"]
    for i in range(4): s.append(f"ds_read_b128 {vr(vOF+4*i,4)}, v{t+4} offset:{i*1024}")
    for i in range(4):
        s.append(f"buffer_store_dwordx4 {vr(vOF+4*i,4)}, v{t+5}, s[{sOUT}:{sOUT+3}], s{sT} offen")
        if i < 3: s.append(f"s_add_u32 s{sT}, s{sT}, {8*2048}")
    a.ext(LgkmTracker().feed(s))

def build(opt):
    OPT.clear(); OPT.update(opt); _st[0] = 0
    a = Asm()
    entry(a)
    p1_setup(a)
    c = consts() + p1_setup2()
    groups = dma_groups(0) + dma_groups(1) + dma_groups(2)
    per = len(c) // len(groups)
    for i, g in enumerate(groups):
        a.ext(g)
        if i == 9: flags_setup_late = True
        a.ext(c[i*per:(i+1)*per])
    a.ext(c[len(groups)*per:])
    flags_setup(a)
    stamp(a)
    stage_h(a)
    for g in dma_groups(3): a.ext(g)
    stage_h_stores(a)
    stamp(a)
    p1_main(a)
    stamp(a)
    ZR, ZI, K0 = mid(a)
    stamp(a)
    stage_s(a, ZR, ZI)
    stamp(a)
    attention(a, K0)
    phase3(a)
    if OPT.get("stamps"): a("s_waitcnt vmcnt(0)")
    stamp(a)
    stamp_out(a)
    a("L_end:"); a("s_endpgm")
    fallback(a)
    body = resolve_waits(a.lines)
    rep = []
    body = hazard.fix(body, rep)
    if OPT.get("verbose"):
        for w, tx in rep: print("nop", w, tx, file=sys.stderr)
    ref = open("gated_mix__mha_block__spectral_fnet__prompt.s.ref").read().split("\n")
    head = [x for x in ref if x.startswith(";") and "@launch" not in x and "Override" not in x and "grid=ceil" not in x]
    h = Asm()
    h.lines = head + [f"; @launch grid=(256,1,1) block=(256,1,1) lds={LDS_BYTES}"]
    h('.amdgcn_target "amdgcn-amd-amdhsa--gfx950"'); h(".text"); kernel_head(h, NAME)
    return h.text() + "\n".join(body) + '\n.section .rodata,"a"\n' + kernel_desc(NAME, 256+160, 256)
if __name__ == "__main__":
    opt = dict(x.split("=") for x in sys.argv[2:]); opt = {k: int(v) for k, v in opt.items()}
    open(sys.argv[1], "w").write(build(opt))
```

```python
import sys
import gen
src=open(sys.argv[1]).read(); idx=int(sys.argv[3]); K=int(sys.argv[4])
N="gated_mix__mha_block__spectral_fnet__prompt_kernel"
line=[l for l in src.split("\n") if "@launch" in l][0]
real=line.replace("@launch ", f"@launch kernel={N} ")
rep="; @launch kernel=rep_kernel grid=(1,1,1) block=(64,1,1) lds=0"
src=src.replace(line, real+"\n"+rep)
src=src.replace('.section .rodata,"a"', f""".globl rep_kernel
.p2align 8
.type rep_kernel,@function
rep_kernel:
    s_cmp_ge_u32 s2, 1
    s_cbranch_scc1 L_rep_end
    s_load_dwordx2 s[4:5], s[0:1], 88
    s_waitcnt lgkmcnt(0)
    s_mov_b32 s8, s4
    s_mov_b32 s9, s5
    s_mov_b32 s10, {gen.WS_USED}
    s_mov_b32 s11, 0x00020000
    v_mul_u32_u24 v1, 0x1400, v0
    v_and_b32 v1, 0x3ffff, v1
    s_mov_b32 s12, {gen.WS_ST}
    buffer_load_dword v2, v1, s[8:11], s12 offen
    buffer_load_dword v3, v1, s[8:11], s12 offen offset:{idx*8}
    s_waitcnt vmcnt(0)
    v_readlane_b32 s20, v2, 0
    s_nop 3
    v_subrev_u32 v2, s20, v2
    v_subrev_u32 v3, s20, v3
    s_mov_b32 s13, 0
    s_mov_b32 s14, 0
    s_mov_b32 s15, 0
L_rep_loop:
    v_readlane_b32 s16, v2, s13
    v_readlane_b32 s17, v3, s13
    s_nop 3
    s_min_i32 s14, s14, s16
    s_add_i32 s15, s15, s17
    s_add_u32 s13, s13, 1
    s_cmp_lt_u32 s13, 64
    s_cbranch_scc1 L_rep_loop
    s_lshl_b32 s14, s14, 6
    s_sub_i32 s15, s15, s14
    s_mul_i32 s15, s15, {K}
    s_lshr_b32 s15, s15, 6
    s_min_u32 s15, s15, 100000
    s_memrealtime s[18:19]
    s_waitcnt lgkmcnt(0)
L_rep_spin:
    s_memrealtime s[22:23]
    s_waitcnt lgkmcnt(0)
    s_sub_u32 s22, s22, s18
    s_cmp_lt_u32 s22, s15
    s_cbranch_scc1 L_rep_spin
L_rep_end:
    s_endpgm
.section .rodata,"a"
.p2align 6
.amdhsa_kernel rep_kernel
  .amdhsa_next_free_vgpr 8
  .amdhsa_next_free_sgpr 32
  .amdhsa_accum_offset 8
  .amdhsa_group_segment_fixed_size 0
  .amdhsa_kernarg_size 96
  .amdhsa_user_sgpr_count 2
  .amdhsa_user_sgpr_kernarg_segment_ptr 1
  .amdhsa_system_sgpr_workgroup_id_x 1
.end_amdhsa_kernel""")
open(sys.argv[2],"w").write(src)
```

```python
import sys, os, subprocess, struct, ctypes, time
sys.path.insert(0, "cdna_kernels")
import numpy as np
from cdna_launch import AsmKernel, DeviceBuffer, with_harness_metadata, pack_ptr_kernargs, _hip, hip_check

HDR = """; @launch grid=({grid},1,1) block=({block},1,1) lds={lds}
.amdgcn_target "amdgcn-amd-amdhsa--gfx950"
.text
.globl ub_kernel
.p2align 8
.type ub_kernel,@function
ub_kernel:
    s_load_dwordx2 s[4:5], s[0:1], 0
    s_load_dwordx2 s[6:7], s[0:1], 8
    s_waitcnt lgkmcnt(0)
    s_mov_b32 s8, s4
    s_mov_b32 s9, s5
    s_mov_b32 s10, {outbytes}
    s_mov_b32 s11, 0x00020000
    s_mov_b32 s12, s6
    s_mov_b32 s13, s7
    s_mov_b32 s14, {inbytes}
    s_mov_b32 s15, 0x00020000
    v_lshrrev_b32 v1, 6, v0
    s_nop 1
    v_readfirstlane_b32 s30, v1
{init}
    s_mov_b32 s20, {iters}
    s_barrier
    s_memtime s[16:17]
    s_memrealtime s[32:33]
    s_waitcnt lgkmcnt(0)
.p2align 6
L_loop:
{body}
    s_sub_u32 s20, s20, 1
    s_cmp_lg_u32 s20, 0
    s_cbranch_scc1 L_loop
    s_nop 15
    s_nop 15
    s_memtime s[18:19]
    s_memrealtime s[34:35]
    s_waitcnt lgkmcnt(0)
    s_sub_u32 s18, s18, s16
    s_sub_u32 s34, s34, s32
    s_mul_i32 s21, s2, {wavesx4}
    s_lshl_b32 s22, s30, 2
    s_add_u32 s21, s21, s22
    v_mov_b32 v1, s21
    v_mov_b32 v2, s18
    v_lshlrev_b32 v1, 1, v1
    v_mov_b32 v3, s34
    buffer_store_dwordx2 v[2:3], v1, s[8:11], 0 offen
    s_waitcnt vmcnt(0)
    s_endpgm
.section .rodata,"a"
.p2align 6
.amdhsa_kernel ub_kernel
  .amdhsa_next_free_vgpr {nvgpr}
  .amdhsa_next_free_sgpr 64
  .amdhsa_accum_offset {accum}
  .amdhsa_group_segment_fixed_size 0
  .amdhsa_kernarg_size 16
  .amdhsa_user_sgpr_count 2
  .amdhsa_user_sgpr_kernarg_segment_ptr 1
  .amdhsa_system_sgpr_workgroup_id_x 1
  .amdhsa_float_denorm_mode_32 3
.end_amdhsa_kernel
"""

def dflt_init(n):
    return "\n".join(f"    v_mov_b32 v{i}, 0x3c003c00" for i in range(3, n))

_in = None
def run(name, body, waves=4, iters=200, nvgpr=128, init=None, lds=0, grid=256, inbytes=1<<20, per=1, unroll=16, accum=None, idle=0.0):
    global _in
    block = waves*64
    body = '\n'.join([body]*unroll)
    if init is None: init = dflt_init(min(nvgpr,256))
    if accum is None: accum = min(256, (nvgpr+3)//4*4)
    src = HDR.format(grid=grid, block=block, lds=lds, outbytes=grid*waves*8, inbytes=inbytes, init=init, iters=iters,
                     body=body, wavesx4=waves*4, nvgpr=nvgpr, accum=accum)
    src = with_harness_metadata(src, "ub_kernel", 2)
    open("ub.s","w").write(src)
    r = subprocess.run(["clang","-x","assembler","-target","amdgcn-amd-amdhsa","-mcpu=gfx950","ub.s","-o","ub.co"],capture_output=True,text=True)
    if r.returncode: print(name, "ASM ERROR", r.stderr[:300]); return
    if not os.path.exists("/dev/kfd"):
        print(name, "assembled"); return
    k = AsmKernel("ub.co","ub_kernel")
    out = DeviceBuffer(grid*waves*8)
    if _in is None:
        g = (np.random.randn((16<<20)//2).astype(np.float32)*1.28).view(np.uint32)
        _in = DeviceBuffer.from_numpy((g>>16).astype(np.uint16))
    ka = pack_ptr_kernargs([out.ptr, _in.ptr])
    e0=ctypes.c_void_p(); e1=ctypes.c_void_p()
    hip_check(_hip.hipEventCreate(ctypes.byref(e0))); hip_check(_hip.hipEventCreate(ctypes.byref(e1)))
    for _ in range(2): k.launch((grid,1,1),(block,1,1),ka,lds)
    hip_check(_hip.hipDeviceSynchronize())
    if idle: time.sleep(idle)
    hip_check(_hip.hipEventRecord(e0,None))
    k.launch((grid,1,1),(block,1,1),ka,lds)
    hip_check(_hip.hipEventRecord(e1,None)); hip_check(_hip.hipEventSynchronize(e1))
    ms=ctypes.c_float(); hip_check(_hip.hipEventElapsedTime(ctypes.byref(ms),e0,e1))
    oo = out.to_numpy(np.uint32,(grid*waves,2)).astype(np.float64)
    o = oo[:,0]; clk = np.median(oo[:,0]/np.maximum(oo[:,1],1))*100
    it = iters*unroll
    wps = max(1, waves//4)
    mx = np.median(o.reshape(grid,waves).max(axis=1))/it
    print(f"{name:46s} w/SIMD={wps:2d} cyc/body min={o.min()/it:8.1f} max={mx:8.1f} per-wave-unit={mx/per/wps:7.2f} wall={ms.value*1e3:8.1f}us clk={clk:.0f}MHz t/unit={np.median(oo.reshape(grid,waves,2)[:,:,1].max(axis=1))*10/it/per/wps:.2f}ns cE={mx/per/wps*(2400/clk-1):.1f}", flush=True)
    k.unload(); out.free()
```

```python
from ub import run, dflt_init
init = dflt_init(200) + "\n    v_mov_b32 v3, 0xdddddddd\n    v_and_b32 v2, 63, v0\n    v_lshlrev_b32 v2, 4, v2\n"
def half(S, Snext, Qn, Mn, O, L, ds=[] , order=0):
    e = [f"v_exp_f32 v{S+i}, v{S+i}" for i in range(16)]
    qk0 = f"v_mfma_f32_32x32x16_bf16 v[{Snext}:{Snext+15}], v[48:51], v[{Qn}:{Qn+3}], v[{Mn}:{Mn+15}]"
    qk1 = f"v_mfma_f32_32x32x16_bf16 v[{Snext}:{Snext+15}], v[52:55], v[{Qn+4}:{Qn+7}], v[{Snext}:{Snext+15}]"
    pv0 = f"v_smfmac_f32_32x32x32_bf16 v[{O}:{O+15}], v[56:59], v[{S}:{S+7}], v3"
    pv1 = f"v_smfmac_f32_32x32x32_bf16 v[{O}:{O+15}], v[60:63], v[{S+8}:{S+15}], v3"
    s0 = f"v_smfmac_f32_16x16x64_bf16 v[{L}:{L+3}], v[152:155], v[{S}:{S+7}], v3"
    s1 = f"v_smfmac_f32_16x16x64_bf16 v[{L}:{L+3}], v[152:155], v[{S+8}:{S+15}], v3"
    return e,qk0,qk1,pv0,pv1,s0,s1
def body3(ds):
    Sb=[16,32,160]
    out=[]
    for t in range(6):
        S=Sb[t%3]; Sn=Sb[(t+1)%3]; Sp=Sb[(t+2)%3]
        q = 64 if t%2 else 72; m = 112 if t%2 else 128
        O = 80 if t%2==0 else 96; L=144 if t%2==0 else 148
        Op = 96 if t%2==0 else 80; Lp=148 if t%2==0 else 144
        e,qk0,qk1,pv0,pv1,s0,s1 = half(S,Sn,q,m,O,L)
        _,_,_,_,ppv1,_,ps1 = half(Sp,S,q,m,Op,Lp)
        seq = [qk0,e[0],e[1],e[2],qk1,e[3],e[4],e[5],ppv1,e[6],e[7],e[8],ps1,e[9],e[10],pv0,e[11],e[12],e[13],s0,e[14],e[15]]
        if ds:
            seq.insert(3, f"ds_read_b128 v[{176+8*(t%2)}:{179+8*(t%2)}], v2 offset:{1024*(t%4)}")
            seq.insert(12, f"ds_read_b128 v[{180+8*(t%2)}:{183+8*(t%2)}], v2 offset:{4096+1024*(t%4)}")
            seq.append("s_waitcnt lgkmcnt(2)")
        out+=seq
    return "\n".join("    "+l for l in out)
for w in (4,8) if __name__=="__main__" else ():
    run("attn 6 tiles smfmac", body3(0), waves=w, init=init, nvgpr=200, per=6, unroll=4, lds=16384)
    run("attn 6 tiles smfmac + ds", body3(1), waves=w, init=init, nvgpr=200, per=6, unroll=4, lds=16384)
```

```python
from ub import run, dflt_init
from ub4 import half, init
import sys
def body3(ins):
    Sb=[16,32,160]
    out=[]
    for t in range(6):
        S=Sb[t%3]; Sn=Sb[(t+1)%3]; Sp=Sb[(t+2)%3]
        q = 64 if t%2 else 72; m = 112 if t%2 else 128
        O = 80 if t%2==0 else 96; L=144 if t%2==0 else 148
        Op = 96 if t%2==0 else 80; Lp=148 if t%2==0 else 144
        e,qk0,qk1,pv0,pv1,s0,s1 = half(S,Sn,q,m,O,L)
        _,_,_,_,ppv1,_,ps1 = half(Sp,S,q,m,Op,Lp)
        seq = [qk0,e[0],e[1],e[2],qk1,e[3],e[4],e[5],ppv1,e[6],e[7],e[8],ps1,e[9],e[10],pv0,e[11],e[12],e[13],s0,e[14],e[15]]
        for pos, f in sorted(ins, key=lambda x:-x[0]):
            s=f(t)
            if s: seq.insert(pos, s)
        out+=seq
    return "\n".join("    "+l for l in out)
d0=lambda t: f"ds_read_b128 v[{176+8*(t%2)}:{179+8*(t%2)}], v2 offset:{1024*(t%4)}"
d1=lambda t: f"ds_read_b128 v[{180+8*(t%2)}:{183+8*(t%2)}], v2 offset:{4096+1024*(t%4)}"
da0=lambda t: f"ds_read_b128 a[{8*(t%2)}:{3+8*(t%2)}], v2 offset:{1024*(t%4)}"
da1=lambda t: f"ds_read_b128 a[{4+8*(t%2)}:{7+8*(t%2)}], v2 offset:{4096+1024*(t%4)}"
w2=lambda t: "s_waitcnt lgkmcnt(2)"
nop=lambda t: "s_nop 0"
sa=lambda t: "s_add_u32 s40, s40, 1"
cases = {
 "base": [],
 "nop after exp": [(2,nop)],
 "nop after mfma": [(1,nop)],
 "nop after smfmac32": [(9,nop)],
 "nop after smfmac16": [(13,nop)],
 "salu after exp": [(2,sa)],
 "salu after mfma": [(1,sa)],
 "wait after exp": [(2,w2)],
 "wait after mfma": [(1,w2)],
 "ds after exp": [(2,d0)],
 "ds after mfma": [(1,d0)],
 "ds after smfmac32": [(9,d0)],
 "ds after smfmac16": [(13,d0)],
 "ds before mfma": [(4,d0)],
 "2ds after mfma,mfma": [(1,d0),(5,d1)],
 "2ds adjacent after smfmac32": [(9,d0),(9,d1)],
 "2ds after smfmac32 x2": [(9,d0),(16,d1)],
 "2ds after smfmac32 x2 + wait after mfma": [(9,d0),(16,d1),(1,w2)],
 "2ds(agpr dst) after smfmac32 x2": [(9,da0),(16,da1)],
}
for w in (4,8) if __name__=="__main__" else ():
    for k,v in cases.items():
        run(k, body3(v), waves=w, init=init, nvgpr=216, accum=200, per=6, unroll=4, lds=16384, iters=100)
```

```python
from ub import run
from ub4 import init
from ub5 import body3
w128=lambda t: f"ds_write_b128 v2, a[0:3] offset:{1024*(t%4)}"
w64=lambda t: f"ds_write_b64 v2, a[0:1] offset:{1024*(t%4)}"
w32=lambda t: f"ds_write_b32 v2, a0 offset:{1024*(t%4)}"
tr=lambda t: f"ds_read_b64_tr_b16 a[4:5], v2 offset:{1024*(t%4)}"
gl=lambda t: f"buffer_load_dwordx4 v2, s[12:15], 0 offen offset:{1024*(t%4)} lds"
g=lambda t: f"buffer_load_dwordx4 a[{8+4*(t%2)}:{11+4*(t%2)}], v2, s[12:15], 0 offen offset:{1024*(t%4)} sc1"
w=lambda t: "s_waitcnt vmcnt(4)"
names={1:"qk0",5:"qk1",9:"ppv1",13:"ps1",16:"pv0",20:"s0"}
cases={"base":[]}
for p,n in names.items():
    cases[f"w128 after {n}"]=[(p,w128)]
for p in (9,13):
    cases[f"w64 after {names[p]}"]=[(p,w64)]; cases[f"tr after {names[p]}"]=[(p,tr)]
cases["tr after qk0"]=[(1,tr)]
cases["2 tr after ps1"]=[(13,tr),(13,tr)]
cases["ld+tr after ps1"]=[(13,tr),(13,g),(1,w)]
cases["tr+ld after ps1"]=[(13,g),(13,tr),(1,w)]
for p in (1,9,16): cases[f"dma after {names[p]}"]=[(p,gl),(5,w)]
for k,v in cases.items():
    run(k, body3(v), waves=4, init=init+"\n    s_lshl_b32 m0, s30, 12\n", nvgpr=216, accum=200, per=6, unroll=4, lds=16384, iters=60)
```
